```python
import torch

def _softmax(x, axis=-1):
    return torch.softmax(x, dim=axis)
def _gelu(x):
    return torch.nn.functional.gelu(x, approximate="tanh")
def _silu(x):
    return torch.nn.functional.silu(x)
def _sigmoid(x):
    return torch.sigmoid(x)
def _layernorm(x, axis=-1, eps=1e-5):
    m = x.mean(dim=axis, keepdim=True)
    v = x.var(dim=axis, keepdim=True, unbiased=False)
    return (x - m) / torch.sqrt(v + eps)
def _scatter_add(tgt, idx, src, axis=0):
    return tgt.clone().index_add_(axis, idx, src)
def _segment_sum(src, seg, n):
    out = torch.zeros((n,) + src.shape[1:], dtype=src.dtype)
    return out.index_add_(0, seg, src)
def _pad(x, pw):
    flat = tuple(v for pair in reversed(pw) for v in pair)
    return torch.nn.functional.pad(x, flat)

kernel_name = 'recurrent_scan__linear_attn_block__swiglu_ffn__prompt'

def setup_inputs():

    _w = (lambda a: (lambda t: t.to(torch.bfloat16) if t.is_floating_point() else t)(torch.as_tensor(a)))
    def _A_setup():
        B, S, D = 1, 2048, 640
        return {
            "x": _w((lambda *s: torch.randn(*s, dtype=torch.bfloat16) * 0.05)(B, S, D)),
            "wqkv": _w((lambda *s: torch.randn(*s, dtype=torch.bfloat16) * 0.05)(D, 3 * D)),
            "wo": _w((lambda *s: torch.randn(*s, dtype=torch.bfloat16) * 0.05)(D, D)),
        }
    _A_in = _A_setup()

    def _B_setup():
        B, S, D, F = 1, 2048, 640, 1728
        return {
            "x": _w((lambda *s: torch.randn(*s, dtype=torch.bfloat16) * 0.05)(B, S, D)),
            "w_gate": _w((lambda *s: torch.randn(*s, dtype=torch.bfloat16) * 0.05)(D, F)),
            "w_up": _w((lambda *s: torch.randn(*s, dtype=torch.bfloat16) * 0.05)(D, F)),
            "w_down": _w((lambda *s: torch.randn(*s, dtype=torch.bfloat16) * 0.05)(F, D)),
        }
    _B_in = _B_setup()

    return {
        "A_x": _A_in["x"],
        "A_wqkv": _A_in["wqkv"],
        "A_wo": _A_in["wo"],
        "B_x": _B_in["x"],
        "B_w_gate": _B_in["w_gate"],
        "B_w_up": _B_in["w_up"],
        "B_w_down": _B_in["w_down"],
    }

def reference(A_x, A_wqkv, A_wo, B_x, B_w_gate, B_w_up, B_w_down):
    def _A_ref(x, wqkv, wo):
        B, S, D = x.shape
        H = 32; Dh = D // H
        qkv = (lambda x, *d: x.permute(*d))((x @ wqkv).reshape(B, S, 3, H, Dh), 2, 0, 3, 1, 4)
        q, k, v = qkv[0], qkv[1], qkv[2]
        phi = lambda t: torch.where(t > 0, t + 1, torch.exp(t)) + 1e-6
        pq, pk = phi(q), phi(k)
        kv = torch.einsum("bhsd,bhse->bhde", pk, v)
        z = torch.einsum("bhsd->bhd", pk)
        num = torch.einsum("bhqd,bhde->bhqe", pq, kv)
        den = torch.einsum("bhqd,bhd->bhq", pq, z)[..., None] + 1e-6
        o = num / den
        return (lambda x, *d: x.permute(*d))(o, 0, 2, 1, 3).reshape(B, S, D) @ wo

    def _B_ref(x, w_gate, w_up, w_down):
        g = _silu(x @ w_gate)
        u = x @ w_up
        return (g * u) @ w_down

    x = A_x
    xn = _layernorm(x, axis=-1)
    s = _A_ref(xn, A_wqkv, A_wo)
    g = _silu(_B_ref(xn, B_w_gate, B_w_up, B_w_down))
    return x + s * g
```

```python
import re


def v(n, c=1):
    return f"v{n}" if c == 1 else f"v[{n}:{n + c - 1}]"


def a(n, c=1):
    return f"a{n}" if c == 1 else f"a[{n}:{n + c - 1}]"


def s(n, c=1):
    return f"s{n}" if c == 1 else f"s[{n}:{n + c - 1}]"


def R(spec, off=0, c=1):
    f, n = spec
    return (v if f == "v" else a)(n + off, c)


class Emit:
    def __init__(self):
        self.lines = []
        self.vmq = []
        self.lgq = []
        self.uid = 0
        self.slow = []

    def fork(self):
        e = Emit()
        e.vmq = list(self.vmq)
        e.lgq = list(self.lgq)
        return e

    def __call__(self, text):
        for t in text.strip().split("\n"):
            t = t.strip()
            if t:
                self.lines.append(t)

    def label(self, name):
        self.lines.append(name + ":")

    def vm(self, text, tag=None, maybe=False):
        self.lines.append(text)
        self.vmq.append((tag, maybe))

    def lg(self, text, tag=None):
        self.lines.append(text)
        self.lgq.append((tag, False))

    @staticmethod
    def _need(q, tags, cap):
        if tags == "all":
            if not q:
                return None, q
            return 0, []
        if not isinstance(tags, (list, tuple, set)) or (isinstance(tags, tuple)):
            tags = [tags]
        last = -1
        for i, (t, _) in enumerate(q):
            if t in tags:
                last = i
        if last < 0:
            return None, q
        n = sum(1 for (_, m) in q[last + 1:] if not m)
        if n > cap:
            k = len(q)
            return cap, q[max(last + 1, k - cap):]
        return n, q[last + 1:]

    def wait(self, vm=None, lg=None):
        parts = []
        if vm is not None:
            n, self.vmq = self._need(self.vmq, vm, 63)
            if n is not None:
                parts.append(f"vmcnt({n})")
        if lg is not None:
            n, self.lgq = self._need(self.lgq, lg, 15)
            if n is not None:
                parts.append(f"lgkmcnt({n})")
        if parts:
            self.lines.append("s_waitcnt " + " ".join(parts))
            return 1
        return 0

    def pending_vm(self, tag):
        return any(t == tag for t, _ in self.vmq)

    def nop(self, n):
        while n > 0:
            k = min(n, 16)
            self.lines.append(f"s_nop {k - 1}")
            n -= k


_REG = re.compile(r"^-?\|?([vas])(?:(\d+)|\[(\d+):(\d+)\])\|?$")
TRANS = ("v_exp_f32", "v_log_f32", "v_rcp_f32", "v_rsq_f32", "v_sqrt_f32", "v_sin_f32", "v_cos_f32")


def regs(tok):
    tok = tok.strip()
    if tok in ("vcc",):
        return {("s", 106), ("s", 107)}
    if tok == "vcc_lo":
        return {("s", 106)}
    if tok == "vcc_hi":
        return {("s", 107)}
    if tok == "m0":
        return {("s", 124)}
    if tok == "exec":
        return {("s", 126), ("s", 127)}
    if tok == "exec_lo":
        return {("s", 126)}
    if tok == "exec_hi":
        return {("s", 127)}
    m = _REG.match(tok)
    if not m:
        return set()
    f = m.group(1)
    if m.group(2) is not None:
        return {(f, int(m.group(2)))}
    return {(f, i) for i in range(int(m.group(3)), int(m.group(4)) + 1)}


class Ins:
    def __init__(self, text):
        self.text = text
        t = text.split(";")[0].strip()
        p = t.split(None, 1)
        self.op = p[0]
        rest = p[1] if len(p) > 1 else ""
        ops = [x.strip() for x in rest.split(",")]
        if ops:
            ops[-1] = ops[-1].split()[0] if ops[-1] else ""
        self.mods = rest
        self.ops = ops
        op = self.op
        self.kind = "other"
        self.rd = set()
        self.wr = set()
        self.srcC = set()
        self.srcAB = set()
        self.passes = 0
        self.states = 1
        self.stdata = set()
        if op == "s_nop":
            self.kind = "nop"
            self.states = int(ops[0]) + 1
        elif op.startswith("v_mfma"):
            self.kind = "mfma"
            self.wr = regs(ops[0])
            self.srcAB = regs(ops[1]) | regs(ops[2])
            self.srcC = regs(ops[3])
            self.rd = self.srcAB | self.srcC
            self.passes = 8 if "32x32x16" in op else 4 if "16x16x32" in op else 2 if "4x4x4" in op else 16
        elif op.startswith("v_"):
            self.kind = "valu"
            self.wr = regs(ops[0])
            for o in ops[1:]:
                self.rd |= regs(o)
            if op.startswith(("v_fmac", "v_dot2c", "v_pk_fmac")):
                self.rd |= self.wr
            if op.startswith("v_permlane"):
                self.wr = regs(ops[0]) | regs(ops[1])
                self.rd = set(self.wr)
            if op.startswith(("v_add_co", "v_sub_co", "v_addc_co")):
                self.wr |= regs(ops[1])
        elif op.startswith("ds_"):
            self.kind = "ds"
            if op.startswith(("ds_read", "ds_bpermute", "ds_swizzle")):
                self.wr = regs(ops[0])
                for o in ops[1:]:
                    self.rd |= regs(o)
            else:
                for o in ops:
                    self.rd |= regs(o)
        elif op.startswith("buffer_"):
            self.kind = "vmem"
            if op in ("buffer_inv", "buffer_wbl2"):
                pass
            elif " lds" in " " + rest:
                for o in ops:
                    self.rd |= regs(o)
                self.rd |= regs("m0")
                self.ldsdma = True
            elif op.startswith("buffer_load"):
                self.wr = regs(ops[0])
                for o in ops[1:]:
                    self.rd |= regs(o)
            else:
                for o in ops:
                    self.rd |= regs(o)
                if op.endswith(("x3", "x4")):
                    self.stdata = regs(ops[0])
                if "atomic" in op and " sc0" in rest:
                    self.wr = regs(ops[0])
        elif op.startswith("s_"):
            self.kind = "salu"
            if op.startswith(("s_cmp", "s_cbranch", "s_branch", "s_waitcnt", "s_barrier", "s_endpgm", "s_sleep", "s_setprio",
                              "s_bitcmp")):
                for o in ops:
                    self.rd |= regs(o)
            else:
                self.wr = regs(ops[0])
                for o in ops[1:]:
                    self.rd |= regs(o)
        self.trans = op.replace("_e64", "").replace("_e32", "") in TRANS


def check_hazards(lines, name=""):
    ins = [Ins(l) for l in lines if not l.endswith(":") and not l.startswith((".", ";"))]
    errs = []
    W = 24
    for i, c in enumerate(ins):
        dist = 0
        for j in range(i - 1, max(-1, i - W - 1), -1):
            p = ins[j]
            need = 0
            vw = {r for r in p.wr if r[0] in "va"}
            sw = {r for r in p.wr if r[0] == "s"}
            if p.kind == "mfma":
                tab = {2: 0, 4: 1, 8: 2, 16: 3}[p.passes]
                if c.kind == "mfma":
                    if vw & c.srcAB:
                        need = max(need, (5, 8, 12, 20)[tab])
                    if vw & c.srcC:
                        if vw == c.srcC and p.passes == c.passes:
                            need = max(need, (2, 0, 0, 0)[tab])
                        else:
                            need = max(need, (4, 6, 10, 18)[tab])
                    elif vw & c.wr:
                        need = max(need, (4, 6, 10, 18)[tab])
                elif c.kind in ("valu", "ds", "vmem"):
                    if vw & (c.rd | c.wr):
                        need = max(need, (5, 8, 12, 20)[tab])
                    if c.kind == "valu" and p.srcC & c.wr:
                        need = max(need, (1, 3, 7, 15)[tab])
            if p.kind == "valu":
                if c.kind == "mfma" and vw & c.rd:
                    need = max(need, 2)
                if c.kind == "valu":
                    if p.trans and vw & c.rd:
                        need = max(need, 1)
                    if c.op.startswith("v_permlane") and vw & c.rd:
                        need = max(need, 2)
                    if c.op.startswith(("v_readfirstlane", "v_readlane")) and vw & c.rd:
                        need = max(need, 1)
                    if sw & c.rd:
                        need = max(need, 2)
                    if ("dpp" in c.op or "row_" in c.mods or "quad_perm" in c.mods) and vw & c.rd:
                        need = max(need, 2)
                    if ("sdwa" in p.op or "op_sel" in p.mods) and vw & (c.rd | c.wr):
                        need = max(need, 1)
                if c.kind == "vmem" and sw & c.rd:
                    need = max(need, 5)
            if p.kind == "salu" and ("s", 124) in sw and c.kind == "vmem" and ("s", 124) in c.rd:
                need = max(need, 1)
            if p.kind == "vmem" and p.stdata and p.stdata & c.wr:
                need = max(need, 2 if c.kind in ("valu", "mfma") else 1)
            if need > dist:
                errs.append(f"{name}: need {need} have {dist}:\n   {p.text}\n   {c.text}")
            dist += p.states
            if dist >= 20:
                break
    return errs
```

```python
import sys, struct, math
from emit import *

NAME = "recurrent_scan__linear_attn_block__swiglu_ffn__prompt"
CFG = dict(map84=1, rot=1, stamps=0, codepf=1)
for arg in sys.argv[2:]:
    k, val = arg.split("=")
    CFG[k] = int(val)

WS_A2 = 0
WS_B2 = 0xA00000
WS_PQ = 0xD00000
WS_KV = 0x1000000
WS_CNT = WS_KV + 192 * 1024
WS_ST = WS_CNT + 16 * 1024
WS_SIZE = 0x1100000
OOB = 0x40000000
CNT_KV = WS_CNT
CNT_PQ = WS_CNT + 8 * 128
AUX = 80 * 1024


def f32(x):
    return "0x%08x" % struct.unpack("<I", struct.pack("<f", x))[0]


LOG2E = 1.4426950408889634
LN2 = 0.6931471805599453

S_X, S_W, S_WS, S_DBG, S_P = 4, 8, 12, 16, 20
SEG1, SEG2 = 24, 34
P_X, P_QKV, P_WO, P_BX, P_G, P_U, P_D, P_OUT, P_DBG, P_WS = range(44, 64, 2)
sW, sRB, sID, sRHO, sT0, sT1, sT2, sT3 = range(64, 72)
XOFF = 72
sW4K, sHB, sLN2, sEPS, sGU0, sGU1 = 82, 83, 84, 85, 86, 87
PKST = 88
sPK0, sPK1 = 3, 98
sSTAMP = 96
sSPIN = 99
sT4, sT5 = 100, 101


def srd(e, r, ptr, size):
    e(f"s_mov_b32 s{r}, s{ptr}\ns_mov_b32 s{r+1}, s{ptr+1}\ns_mov_b32 s{r+2}, {size}\ns_mov_b32 s{r+3}, 0x20000")


class Stamper:
    def __init__(self, e, vreg):
        self.e, self.v, self.n = e, vreg, 0

    def __call__(self, e=None):
        if not CFG["stamps"]:
            return
        e = e or self.e
        if self.n > 0:
            e(f"v_writelane_b32 v{self.v}, s{sSTAMP}, {self.n-1}")
        e(f"s_memtime s[{sSTAMP}:{sSTAMP+1}]")
        self.n += 1

    def finish(self, e, kern, vtmp):
        if not CFG["stamps"]:
            return
        self(e)
        e(f"s_waitcnt lgkmcnt(0)\nv_writelane_b32 v{self.v}, s{sSTAMP}, {self.n-1}")
        e(f"v_mbcnt_lo_u32_b32 v{vtmp}, -1, 0\nv_mbcnt_hi_u32_b32 v{vtmp}, -1, v{vtmp}\nv_lshlrev_b32 v{vtmp}, 2, v{vtmp}")
        e(f"s_lshl_b32 s{sT0}, s2, 2\ns_add_u32 s{sT0}, s{sT0}, s{sW}\ns_lshl_b32 s{sT0}, s{sT0}, 8")
        e(f"s_add_u32 s{sT0}, s{sT0}, {WS_ST + kern*262144}")
        e(f"buffer_store_dword v{self.v}, v{vtmp}, s[{S_WS}:{S_WS+3}], s{sT0} offen")


_lbl = [0]


def poll_check(e, vreg, target, load_text, mode="ge"):
    _lbl[0] += 1
    n = _lbl[0]
    cmp_ = f"v_cmp_gt_u32 vcc, {target}, v{vreg}"
    e(cmp_)
    e(f"s_cbranch_vccnz L_spin{n}")
    e.label(f"L_back{n}")
    e.slow += [f"L_spin{n}:", f"s_mov_b32 s{sSPIN}, 0", f"L_spinl{n}:", load_text, f"s_add_u32 s{sSPIN}, s{sSPIN}, 1",
               f"s_cmp_gt_u32 s{sSPIN}, 0x40000", f"s_cbranch_scc1 L_spinx{n}", "s_waitcnt vmcnt(0)", cmp_,
               f"s_cbranch_vccnz L_spinl{n}", f"L_spinx{n}:", "s_waitcnt vmcnt(0)", f"s_branch L_back{n}"]


class K1:
    def __init__(self, typ):
        self.typ = typ
        B = typ == "B"
        self.vLANE, self.vHS, self.vL16, self.vK1, self.vC, self.vK2 = 1, 2, 3, 4, 5, 6
        self.vTR = 8
        self.vWV2 = 12
        self.vT = 16
        self.vPOLL, self.vSIG, self.vONE, self.vPOLL2, self.vST = 24, 25, 26, 27, 28
        self.vKTR = 29
        if not B:
            self.ACC = [32, 96]
            self.TMP = 96
            self.ARCH = [0, 5, 6, 7, 8, 9]
            self.AARCH = 160
        else:
            self.KVACC = 32
            self.ACC = [112]
            self.TMP = 112
            self.RV, self.RK = 176, 192
            self.ARCH = [0, 1, 2]
            self.AARCH = 208
        T = self.TMP
        self.vCT = T
        self.vID = T + 32
        self.vONES = T + 34
        self.vNM = T + 36
        self.vWV1 = T + 40
        self.vXV = T + 48
        self.vPA = T + 52
        self.vXR = T + 56
        self.FR = 160
        self.m0key = None

    def A(self, u):
        S = u >> 2
        return v(self.AARCH + 16 * self.ARCH.index(S) + 4 * (u & 3), 4) if S in self.ARCH else a(4 * u, 4)

    def set_m0(self, e, key, text):
        if self.m0key != key:
            e(text)
            self.m0key = key
            return 1
        return 0

    def prologue(self, e):
        B = self.typ == "B"
        L = self.vLANE
        T = self.vT
        st = self.stamp
        e(f"v_lshrrev_b32 v{T}, 3, v{L}")
        e(f"v_and_b32 v{T+1}, 7, v{L}")
        e(f"v_lshrrev_b32 v{T+2}, 1, v{T}")
        e(f"v_xor_b32 v{T+2}, v{T+1}, v{T+2}")
        e(f"v_mul_u32_u24 v{T+3}, 1280, v{T}")
        e(f"v_lshl_add_u32 v{self.vXV}, v{T+2}, 4, v{T+3}")
        e(f"v_xor_b32 v{self.vXV+1}, 64, v{self.vXV}")
        e(f"v_add_u32 v{self.vXV+2}, {2*9216}, v{self.vXV}")
        e(f"v_add_u32 v{self.vXV+3}, {3*9216}, v{self.vXV+1}")
        e(f"v_add_u32 v{self.vXV+1}, {9216}, v{self.vXV+1}")
        e(f"s_lshl_b32 s{sT0}, s{sRB}, 2\ns_add_u32 s{sT0}, s{sT0}, s{sW}\ns_mul_i32 s{sT0}, s{sT0}, {32*1280}")
        e(f"s_mov_b32 s{sT1}, s{sRHO}")
        for i in range(10):
            e(f"s_lshl_b32 s{sT2}, s{sT1}, 7\ns_add_u32 s{XOFF+i}, s{sT0}, s{sT2}\ns_mov_b32 s{SEG2+i}, s{sT1}")
            if i < 9:
                e(f"s_add_u32 s{sT1}, s{sT1}, 1\ns_cmp_eq_u32 s{sT1}, 10\ns_cselect_b32 s{sT1}, 0, s{sT1}")
        e(f"s_mul_i32 s{sT3}, s{sW}, {20*1024}\ns_add_u32 s{sT3}, s{sT3}, {AUX}")
        e("s_waitcnt lgkmcnt(0)")
        srd(e, S_X, P_X, 2048 * 1280)

        def xdma(i):
            e(f"s_add_u32 m0, s{sT3}, {(i % 5) * 4096}")
            self.m0key = None
            e("s_nop 0")
            for j in range(4):
                e.vm(f"buffer_load_dwordx4 v{self.vXV+j}, s[{S_X}:{S_X+3}], s{XOFF+i} offen offset:{j*1024} lds", ("x", i))

        xdma(0)
        xdma(1)
        srd(e, S_WS, P_WS, WS_SIZE)
        srd(e, S_DBG, P_DBG, 256)
        e(f"v_lshlrev_b32 v{self.vL16}, 4, v{L}")
        e(f"v_mov_b32 v{self.vONE}, 1")
        if CFG["codepf"]:
            e(f"s_getpc_b64 s[{S_P}:{S_P+1}]")
            e.label(f"L_pc{self.typ}")
            e(f"s_mov_b32 s{S_P+2}, L_end{self.typ}-L_pc{self.typ}\ns_mov_b32 s{S_P+3}, 0x20000")
            e(f"s_lshr_b32 s{sT0}, s2, 3\ns_and_b32 s{sT0}, s{sT0}, 7\ns_lshl_b32 s{sT0}, s{sT0}, 2\ns_add_u32 s{sT0}, s{sT0}, s{sW}")
            e(f"s_lshl_b32 s{sT0}, s{sT0}, 11")
            e(f"v_and_b32 v{T+4}, 15, v{L}\nv_lshlrev_b32 v{T+4}, 7, v{T+4}")
            e.vm(f"buffer_load_dword v{T+5}, v{T+4}, s[{S_P}:{S_P+3}], s{sT0} offen", "cpf")
        if B:
            e(f"s_lshl_b32 s{sT0}, s{sID}, 3\ns_add_u32 s{sT0}, s{sT0}, s{sRB}")
            e(f"s_lshr_b32 s{sT1}, s{sRB}, 3\ns_or_b32 s{sT1}, s{sT1}, s{sW}")
            e(f"s_mul_i32 s{sT2}, s{sT0}, 3072\ns_add_u32 s{sT2}, s{sT2}, {WS_KV}")
            e(f"s_lshl_b32 s{sT4}, s{sT0}, 8\ns_add_u32 s{sT4}, s{sT4}, {WS_CNT}")
            e(f"s_lshl_b32 s{sT5}, s{sT0}, 2")
            e(f"s_cmp_eq_u32 s{sT1}, 0")
            e(f"s_cselect_b32 s{sT2}, s{sT2}, {OOB}\ns_cselect_b32 s{sT4}, s{sT4}, {OOB}\ns_cselect_b32 s{sT5}, s{sT5}, {OOB}")
            for i in range(4):
                e(f"v_mov_b32 v{self.RV+i}, 0")
            e(f"v_lshlrev_b32 v{T+6}, 2, v{L}")
            for i in range(3):
                e.vm(f"buffer_store_dwordx4 v[{self.RV}:{self.RV+3}], v{self.vL16}, s[{S_WS}:{S_WS+3}], s{sT2} offen offset:{i*1024} sc1", "init")
            e.vm(f"buffer_store_dword v{self.RV}, v{T+6}, s[{S_WS}:{S_WS+3}], s{sT4} offen sc1", "init")
        for i in range(2, 5):
            xdma(i)
        st()
        e(f"v_and_b32 v{T}, 31, v{L}\nv_lshrrev_b32 v{T+1}, 5, v{L}")
        e(f"v_bfe_u32 v{T+2}, v{L}, 1, 3\nv_xor_b32 v{T+2}, v{T+2}, v{T+1}")
        e(f"v_lshlrev_b32 v{T}, 7, v{T}\nv_lshl_add_u32 v{T}, v{T+2}, 4, v{T}")
        for i in range(1, 4):
            e(f"v_xor_b32 v{self.vXR+i}, {32*i}, v{T}\nv_add_u32 v{self.vXR+i}, s{sT3}, v{self.vXR+i}")
        e(f"v_add_u32 v{self.vXR}, s{sT3}, v{T}")
        e(f"v_and_b32 v{T}, 1, v{L}\nv_lshlrev_b32 v{T}, 4, v{T}\nv_mov_b32 v{T+1}, 0x3f80\nv_lshlrev_b32 v{T}, v{T}, v{T+1}")
        e(f"v_and_b32 v{T+1}, 2, v{L}\nv_cmp_eq_u32 vcc, 0, v{T+1}")
        e(f"v_mov_b32 v{self.vONES}, 0x3f803f80\nv_mov_b32 v{self.vONES+1}, 0x3f803f80")
        e(f"v_cndmask_b32 v{self.vID}, 0, v{T}, vcc\nv_xor_b32 v{self.vID+1}, v{self.vID}, v{T}")
        e(f"v_bfe_u32 v{T}, v{L}, 2, 2")
        e(f"v_lshrrev_b32 v{T+1}, 5, v{L}\nv_lshlrev_b32 v{T+1}, 12, v{T+1}")
        e(f"v_lshl_add_u32 v{T+1}, v{T}, 7, v{T+1}")
        e(f"v_bfe_u32 v{T+2}, v{L}, 3, 1\nv_lshl_add_u32 v{T+1}, v{T+2}, 6, v{T+1}")
        e(f"v_bfe_u32 v{T+2}, v{L}, 4, 1\nv_lshl_add_u32 v{T+1}, v{T+2}, 5, v{T+1}")
        e(f"v_and_b32 v{T+2}, 3, v{L}\nv_lshl_add_u32 v{self.vTR}, v{T+2}, 3, v{T+1}")
        e(f"v_xor_b32 v{self.vTR+1}, 64, v{self.vTR}")
        e(f"v_add_u32 v{self.vTR+2}, 0x10000, v{self.vTR}\nv_add_u32 v{self.vTR+3}, 0x10000, v{self.vTR+1}")
        e(f"v_and_b32 v{T}, 15, v{L}\nv_lshlrev_b32 v{T}, 4, v{T}")
        e(f"v_lshrrev_b32 v{T+1}, 5, v{L}\nv_lshl_add_u32 v{T}, v{T+1}, 8, v{T}")
        e(f"v_bfe_u32 v{T+1}, v{L}, 4, 1\nv_lshl_add_u32 v{T}, v{T+1}, 10, v{T}")
        e(f"s_and_b32 s{sT0}, s{sW}, 1\ns_lshl_b32 s{sT0}, s{sT0}, 11\nv_add_u32 v{self.vHS}, s{sT0}, v{T}")
        e(f"s_lshr_b32 s{sT0}, s{sW}, 1\ns_lshl_b32 s{sT1}, s{sRB}, 1\ns_add_u32 s{sT0}, s{sT0}, s{sT1}\ns_mul_i32 s{sHB}, s{sT0}, {74*4096}")
        e(f"s_lshl_b32 s{sW4K}, s{sW}, 12\ns_mov_b32 s{sLN2}, {f32(LN2)}\ns_mov_b32 s{sEPS}, {f32(1e-6/LN2)}")
        e(f"v_cmp_eq_u32 vcc, 0, v0\nv_mov_b32 v{T}, {OOB}\ns_nop 0\nv_cndmask_b32 v{self.vSIG}, v{T}, 0, vcc")
        e(f"s_cmp_lt_u32 s{sW}, 2\ns_cselect_b32 s{sGU0}, s{P_G}, s{P_U}\ns_cselect_b32 s{sGU1}, s{P_G+1}, s{P_U+1}")
        e(f"v_lshrrev_b32 v{T}, 3, v{L}\ns_and_b32 s{sT0}, s{sW}, 1\ns_lshl_b32 s{sT0}, s{sT0}, 3\nv_add_u32 v{T}, s{sT0}, v{T}")
        e(f"v_bfe_u32 v{T+1}, v{L}, 4, 1\nv_lshlrev_b32 v{T+1}, 2, v{T+1}\nv_and_b32 v{T+2}, 7, v{L}\nv_xor_b32 v{T+1}, v{T+1}, v{T+2}")
        e(f"v_lshlrev_b32 v{T+1}, 4, v{T+1}")
        e(f"v_mul_u32_u24 v{T+2}, 3456, v{T}\nv_add_u32 v{self.vWV2}, v{T+2}, v{T+1}")
        for j in range(1, 4):
            e(f"v_add_u32 v{self.vWV2+j}, {j*(16*3456-1024)}, v{self.vWV2}")
        if not B:
            e(f"s_cmp_lt_u32 s{sID}, 5\ns_cselect_b32 s{sT0}, 3840, s{sT0}\ns_cbranch_scc1 L_g1q")
            e(f"s_add_u32 s{sT1}, s{sID}, 11\ns_lshl_b32 s{sT1}, s{sT1}, 7")
            e(f"s_add_u32 s{S_W}, s{sGU0}, s{sT1}\ns_addc_u32 s{S_W+1}, s{sGU1}, 0\ns_sub_u32 s{S_W+2}, {640*3456}, s{sT1}")
            e(f"s_mov_b32 s{sT0}, 3456\ns_branch L_g1d")
            e.label("L_g1q")
            e(f"s_lshl_b32 s{sT1}, s{sID}, 1\ns_lshr_b32 s{sT2}, s{sW}, 1\ns_add_u32 s{sT1}, s{sT1}, s{sT2}\ns_lshl_b32 s{sT1}, s{sT1}, 7")
            e(f"s_add_u32 s{S_W}, s{P_QKV}, s{sT1}\ns_addc_u32 s{S_W+1}, s{P_QKV+1}, 0\ns_sub_u32 s{S_W+2}, {640*3840}, s{sT1}")
            e.label("L_g1d")
            e(f"s_mov_b32 s{S_W+3}, 0x20000")
            e(f"v_mul_u32_u24 v{T+2}, s{sT0}, v{T}\nv_add_u32 v{self.vWV1}, v{T+2}, v{T+1}")
            e(f"s_lshl_b32 s{sT1}, s{sT0}, 4\ns_sub_u32 s{sT1}, s{sT1}, 1024")
            for j in range(1, 4):
                e(f"v_add_u32 v{self.vWV1+j}, s{sT1}, v{self.vWV1+j-1}")
            e(f"s_lshl_b32 s{sT0}, s{sT0}, 6")
            for i in range(10):
                e(f"s_mul_i32 s{SEG1+i}, s{SEG2+i}, s{sT0}")
        else:
            e(f"s_mul_i32 s{sT1}, s{sID}, 160")
            e(f"s_add_u32 s{S_W}, s{P_QKV}, s{sT1}\ns_addc_u32 s{S_W+1}, s{P_QKV+1}, 0\ns_sub_u32 s{S_W+2}, {640*3840}, s{sT1}")
            e(f"s_mov_b32 s{S_W+3}, 0x20000")
            e(f"s_mul_i32 s{sT0}, s{sW}, {16*3840}")
            for i in range(5):
                e(f"v_add_u32 v{T}, {64*i}, v{L}\nv_mul_u32_u24 v{T+1}, 3277, v{T}\nv_lshrrev_b32 v{T+1}, 16, v{T+1}")
                e(f"v_mul_u32_u24 v{T+2}, 20, v{T+1}\nv_sub_u32 v{T+2}, v{T}, v{T+2}")
                e(f"v_mov_b32 v{T+3}, {1280}\nv_mov_b32 v{T+4}, {2560-32}\nv_cmp_lt_u32 vcc, 9, v{T+2}\nv_mov_b32 v{T+6}, {2560-192}\ns_nop 0")
                e(f"v_cndmask_b32 v{T+3}, v{T+3}, v{T+4}, vcc\nv_cmp_lt_u32 vcc, 11, v{T+2}")
                e(f"v_mul_u32_u24 v{T+1}, 3840, v{T+1}\nv_lshl_add_u32 v{T+1}, v{T+2}, 4, v{T+1}")
                e(f"v_cndmask_b32 v{T+3}, v{T+3}, v{T+6}, vcc")
                e(f"v_add3_u32 v{self.vWV1+i}, v{T+1}, v{T+3}, s{sT0}")
                if 0 < i < 4:
                    e(f"v_subrev_u32 v{self.vWV1+i}, {1024*i}, v{self.vWV1+i}")
            for i in range(10):
                e(f"s_mul_i32 s{SEG1+i}, s{SEG2+i}, {64*3840}")
            e(f"v_bfe_u32 v{T}, v{L}, 2, 2\nv_lshrrev_b32 v{T+1}, 5, v{L}\nv_lshl_add_u32 v{T}, v{T+1}, 3, v{T}\nv_mul_u32_u24 v{T}, 320, v{T}")
            e(f"v_bfe_u32 v{T+1}, v{L}, 4, 1\nv_lshl_add_u32 v{T}, v{T+1}, 5, v{T}")
            e(f"v_and_b32 v{T+1}, 3, v{L}\nv_lshl_add_u32 v{self.vKTR}, v{T+1}, 3, v{T}")
            e(f"v_add_u32 v{self.vKTR+1}, {60*1024}, v{self.vKTR}\nv_add_u32 v{self.vKTR+2}, {120*1024}, v{self.vKTR}")
        for i in range(10):
            e(f"s_mul_i32 s{SEG2+i}, s{SEG2+i}, {64*3456}")
        if not B:
            self.pack_setup(e)
        SA = self.vCT

        def stats(i):
            for j in range(8):
                first = i == 0 and j < 2
                src = a(16 * i + 2 * j, 2)
                d0, d1 = v(SA + 8 * (j & 1), 4), v(SA + 8 * (j & 1) + 4, 4)
                e(f"v_mfma_f32_4x4x4_16b_bf16 {d0}, {v(self.vONES,2)}, {src}, {'0' if first else d0}")
                e(f"v_mfma_f32_4x4x4_16b_bf16 {d1}, {src}, {src}, {'0' if first else d1}")

        for i in range(10):
            e.wait(vm=("x", i))
            if i == 0:
                st()
            for j in range(4):
                e.lg(f"ds_read_b128 {a(16*i+4*j,4)}, v{self.vXR+j} offset:{(i%5)*4096}", ("xr", i))
            if B and i == 2:
                assert not e.pending_vm("init")
                e.vm(f"buffer_store_dword v{self.vONE}, v{self.vSIG}, s[{S_DBG}:{S_DBG+3}], s{sT5} offen sc1", "initf")
            if i > 0:
                stats(i - 1)
            e.wait(lg=("xr", i))
            if i < 5:
                xdma(i + 5)
                if i == 4 and not B:
                    srd(e, S_P, P_D, 1728 * 1280)
                    e(f"s_mov_b32 s{S_X}, s{P_BX}\ns_mov_b32 s{S_X+1}, s{P_BX+1}\ns_mov_b32 s{S_X+2}, s{P_OUT}")
            else:
                self.prologue_w(e, i - 5)
        st()
        stats(9)
        e.nop(3)
        S0, Q0, S1, Q1 = SA, SA + 4, SA + 8, SA + 12
        e(f"v_and_b32 v{T}, 1, v{L}\nv_cmp_eq_u32 vcc, 1, v{T}\nv_and_b32 v{T+1}, 2, v{L}")
        e(f"v_add_f32 v{S0}, v{S0}, v{S1}")
        for i in range(4):
            e(f"v_add_f32 v{Q0+i}, v{Q0+i}, v{Q1+i}")
        e(f"v_cndmask_b32 v{Q0}, v{Q0}, v{Q0+1}, vcc\nv_cndmask_b32 v{Q0+2}, v{Q0+2}, v{Q0+3}, vcc")
        e(f"v_cmp_ne_u32 vcc, 0, v{T+1}\nv_mov_b32 v{S1}, v{S0}\ns_nop 0")
        e(f"v_cndmask_b32 v{Q0}, v{Q0}, v{Q0+2}, vcc")
        e(f"v_permlane32_swap_b32 v{S0}, v{S1}")
        e(f"v_mov_b32 v{Q1}, v{Q0}")
        e(f"v_add_f32 v{S0}, v{S0}, v{S1}")
        e(f"v_mul_f32 v{S0}, {f32(1/640)}, v{S0}")
        e(f"v_permlane32_swap_b32 v{Q0}, v{Q1}")
        e(f"v_cvt_pk_bf16_f32 v{S1}, v{S0}, v{S0}")
        e(f"v_add_f32 v{Q0}, v{Q0}, v{Q1}")
        e(f"v_and_b32 v{S1}, 0xffff0000, v{S1}")
        for i in range(4):
            e(f"v_xor_b32 v{self.vNM+i}, 0x80000000, v{S1}")
        e(f"v_mul_f32 v{T}, v{S0}, v{S0}")
        e(f"v_mul_f32 v{T+1}, {f32(1/640)}, v{Q0}")
        self.center_mfma(e, 0)
        e(f"v_sub_f32 v{T}, v{T+1}, v{T}\nv_max_f32 v{T}, 0, v{T}")
        e(f"v_cvt_pk_bf16_f32 v{T}, v{T}, v{T}\nv_and_b32 v{T}, 0xffff0000, v{T}")
        e(f"v_add_f32 v{T}, {f32(1e-5)}, v{T}")
        e(f"v_cvt_pk_bf16_f32 v{T}, v{T}, v{T}\nv_and_b32 v{T}, 0xffff0000, v{T}")
        e(f"v_sqrt_f32 v{T}, v{T}")
        cv = self.center_valu(0)
        e(cv[0][0])
        e(f"v_cvt_pk_bf16_f32 v{T}, v{T}, v{T}\nv_and_b32 v{T}, 0xffff0000, v{T}")
        e(f"v_rcp_f32 v{T+1}, v{T}")
        e(f"v_mul_f32 v{self.vC}, v{T}, v{T}")
        e(f"v_mul_f32 v{self.vK2}, {f32(LOG2E)}, v{T+1}\nv_mul_f32 v{self.vK1}, {f32(-LOG2E)}, v{T+1}")
        if B:
            e(f"v_and_b32 v{T+2}, 31, v{L}\nv_lshlrev_b32 v{T+2}, 2, v{T+2}\nv_add_u32 v{T+2}, s{sT3}, v{T+2}")
            e(f"v_lshrrev_b32 v{T+3}, 5, v{L}\nv_lshlrev_b32 v{T+3}, 4, v{T+3}\nv_add_u32 v{T+3}, s{sT3}, v{T+3}")
            e.lg(f"ds_write_b32 v{T+2}, v{T+1}", "rv")
            e.lg(f"ds_write_b32 v{T+2}, v{self.vK2} offset:128", "rv")
            for j in range(4):
                e.lg(f"ds_read_b128 {v(self.RV+4*j,4)}, v{T+3} offset:{32*j}", "rv")
                e.lg(f"ds_read_b128 {v(self.RK+4*j,4)}, v{T+3} offset:{128+32*j}", "rv")
        return cv[1:]

    def center_mfma(self, e, S):
        for j in range(8):
            e(f"v_mfma_f32_4x4x4_16b_bf16 {v(self.vCT+4*j,4)}, {v(self.vID,2)}, {a(16*S+2*j,2)}, {v(self.vNM,4)}")

    def center_valu(self, S):
        q = []
        pend = []
        for j in range(16):
            u = 4 * S + j // 4
            src = self.vCT + 2 * j
            if S in self.ARCH:
                q.append((f"v_cvt_pk_bf16_f32 v{self.AARCH+16*self.ARCH.index(S)+j}, v{src}, v{src+1}", 1))
            else:
                q.append((f"v_cvt_pk_bf16_f32 v{src}, v{src}, v{src+1}", 1))
                pend.append((f"v_accvgpr_write_b32 a{16*S+j}, v{src}", 1))
                if len(pend) > 1:
                    q.append(pend.pop(0))
        return q + pend

    def pack_setup(self, e):
        L, T = self.vLANE, self.vT
        e(f"s_lshl_b32 s{sT0}, s{sID}, 4\ns_add_u32 s{sT0}, s{sT0}, s{sRB}\ns_lshl_b32 s{sT1}, s{sW}, 7\ns_add_u32 s{sT0}, s{sT0}, s{sT1}")
        for j in range(2):
            so = (sPK0, sPK1)[j]
            if j:
                e(f"s_add_u32 s{sT0}, s{sT0}, 512")
            e(f"s_mul_i32 s{sT1}, s{sT0}, 6554\ns_lshr_b32 s{sT1}, s{sT1}, 16")
            e(f"s_mul_i32 s{sT2}, s{sT1}, 10\ns_sub_u32 s{sT2}, s{sT0}, s{sT2}")
            e(f"s_mul_i32 s{so}, s{sT1}, {32*1280}\ns_lshl_b32 s{sT4}, s{sT2}, 7\ns_add_u32 s{so}, s{so}, s{sT4}")
            if j:
                e(f"s_cmp_lt_u32 s{sT1}, 54")
                e(f"s_cselect_b32 s{P_BX}, s{P_D}, s{P_WO}\ns_cselect_b32 s{P_BX+1}, s{P_D+1}, s{P_WO+1}")
                e(f"s_cselect_b32 s{sT4}, 0, {54*32*1280}\ns_mov_b32 s{P_OUT}, {640*1280}\ns_cselect_b32 s{P_OUT}, {1728*1280}, s{P_OUT}")
                e(f"s_sub_u32 s{so}, s{so}, s{sT4}")
            for t in range(4):
                d = PKST + 4 * j + t
                e(f"s_lshl_b32 s{sT4}, s{sT2}, 2\ns_add_u32 s{sT4}, s{sT4}, {t}")
                e(f"s_mul_i32 s{sT5}, s{sT4}, 52\ns_lshr_b32 s{sT5}, s{sT5}, 8")
                e(f"s_mul_i32 s{d}, s{sT5}, {74*5-5}\ns_add_u32 s{d}, s{d}, s{sT4}")
                e(f"s_mul_i32 s{sT5}, s{sT1}, 5\ns_add_u32 s{d}, s{d}, s{sT5}\ns_lshl_b32 s{d}, s{d}, 10\ns_add_u32 s{d}, s{d}, {WS_B2}")
                if j:
                    e(f"s_cmp_lt_u32 s{sT0}, 740\ns_cselect_b32 s{d}, s{d}, {OOB}")
        e(f"v_bfe_u32 v{T}, v{L}, 2, 2\nv_bfe_u32 v{T+1}, v{L}, 4, 1\nv_lshl_add_u32 v{T}, v{T+1}, 2, v{T}")
        e(f"v_lshrrev_b32 v{T+1}, 1, v{T}\nv_bfe_u32 v{T+2}, v{L}, 1, 1\nv_xor_b32 v{T+1}, v{T+1}, v{T+2}")
        e(f"v_lshrrev_b32 v{T+2}, 5, v{L}\nv_lshl_add_u32 v{T}, v{T+2}, 4, v{T}")
        e(f"v_lshlrev_b32 v{T}, 7, v{T}\nv_lshl_add_u32 v{T}, v{T+1}, 4, v{T}")
        e(f"v_and_b32 v{T+1}, 1, v{L}\nv_lshl_add_u32 v{T}, v{T+1}, 3, v{T}")
        for i in range(1, 4):
            e(f"v_xor_b32 v{self.vPA+i}, {32*i}, v{T}\nv_add_u32 v{self.vPA+i}, s{sT3}, v{self.vPA+i}")
        e(f"v_add_u32 v{self.vPA}, s{sT3}, v{T}")

    def pack_events(self, ev):
        PD = 208

        def add(u, t, fn, cost=1):
            ev.setdefault((u, t), []).append((fn, cost))

        u0 = 16
        for j in range(2):
            sr, so = ((S_P, sPK0), (S_X, sPK1))[j]
            for hh in range(2):
                u = u0 + 2 * j + hh

                def m0f(e, j=j):
                    self.set_m0(e, ("pk", j), f"s_add_u32 m0, s{sT3}, {j*4096}")

                add(u, 1, m0f)
                for i in range(2 * hh, 2 * hh + 2):
                    add(u, 2, lambda e, i=i, sr=sr, so=so, j=j: e.vm(
                        f"buffer_load_dwordx4 v{self.vXV+i}, s[{sr}:{sr+3}], s{so} offen offset:{i*1024} lds", ("pk", j)))
        u1 = 30
        add(u1 - 1, 2, lambda e: e.wait(vm=("pk", 1)))
        for j in range(2):
            for t in range(4):
                u = u1 + 4 * j + t
                for rd in range(2):
                    add(u, 2, lambda e, j=j, t=t, rd=rd: e.lg(
                        f"ds_read_b64_tr_b16 {a(PD+16*j+4*t+2*rd,2)}, v{self.vPA+(t^(2*rd))} offset:{j*4096+rd*1024}", ("pkr", j, t)))

                def stf(e, j=j, t=t):
                    e.wait(lg=("pkr", j, t))
                    e.vm(f"buffer_store_dwordx4 {a(PD+16*j+4*t,4)}, v{self.vL16}, s[{S_WS}:{S_WS+3}], s{PKST+4*j+t} offen sc1", "pks")

                add(u + 2, 0, stf)

    def q_slot(self, V):
        return ((V >> 2) + self.slot0) % 5

    def q_dma_pre(self, e, V):
        n = 0
        gi = V // 40
        if V % 40 == 0 and (gi > 0 or self.typ == "B"):
            add = (8 if self.typ == "B" else 0 if gi == 1 else 19)
            e(f"s_add_u32 s{sT0}, s{sID}, {add}\ns_lshl_b32 s{sT0}, s{sT0}, 7")
            e(f"s_add_u32 s{S_W}, s{sGU0}, s{sT0}\ns_addc_u32 s{S_W+1}, s{sGU1}, 0\ns_sub_u32 s{S_W+2}, {640*3456}, s{sT0}")
            n += 5
        n += self.set_m0(e, ("q", V >> 2), f"s_add_u32 m0, s{sW4K}, {self.q_slot(V)*16384}")
        return n

    def q_dma(self, e, V):
        assert self.m0key == ("q", V >> 2)
        first = V < 40 and self.typ != "B"
        wv = (self.vWV1 if first else self.vWV2) + (V & 3)
        seg = (SEG1 if first else SEG2) + (V % 40) // 4
        e.vm(f"buffer_load_dwordx4 v{wv}, s[{S_W}:{S_W+3}], s{seg} offen offset:{(V&3)*1024} lds", ("w", V >> 2))

    def q_read(self, e, U, t, rd):
        mat, th = t & 1, t >> 1
        off = self.q_slot(U) * 16384 + mat * 8192 + (U & 3) * 1024 + rd * 512
        win = off >> 16
        e.lg(f"ds_read_b64_tr_b16 {a(self.FR+16*(U%3)+4*t+2*rd,2)}, v{self.vTR+2*win+th} offset:{off & 0xffff}", ("r", U))

    def kv_base(self, S):
        return (S % 8) * 20480

    def kv_dma(self, e, S, i):
        e.vm(f"buffer_load_dwordx4 v{self.vWV1+i}, s[{S_W}:{S_W+3}], s{SEG1+S} offen offset:{(i&3)*1024} lds", ("kw", S))

    def kv_m0(self, e, S, i):
        return self.set_m0(e, ("kv", S, i >> 2), f"s_add_u32 m0, s{sT4}, {self.kv_base(S) + (i>>2)*4096}")

    def kv_read(self, e, u, t, rd):
        off = self.kv_base(u >> 2) + (u & 3) * 5120 + rd * 1280 + t * 64
        win = off // (60 * 1024)
        e.lg(f"ds_read_b64_tr_b16 {a(self.FR+20*(u%3)+4*t+2*rd,2)}, v{self.vKTR+win} offset:{off - win*60*1024}", ("r", u))

    def prologue_w(self, e, n):
        if self.typ == "B":
            if n == 0:
                e(f"s_mul_i32 s{sT4}, s{sW}, 5120")
            if n < 4:
                for i in range(5):
                    if self.kv_m0(e, n, i):
                        e("s_nop 0")
                    self.kv_dma(e, n, i)
        else:
            for V in range(4 * n, min(4 * n + 4, 17)):
                if self.q_dma_pre(e, V):
                    e("s_nop 0")
                self.q_dma(e, V)

    def fill(self, e, q, budget, memslot):
        while q and budget > 0:
            it = q[0]
            ismem = len(it) > 2
            if ismem and not memslot:
                break
            if it[1] > budget:
                break
            q.pop(0)
            if callable(it[0]):
                it[0](e)
            else:
                e(it[0])
            budget -= it[1]
            if not ismem:
                memslot = False
        return budget

    def quad(self, e, gi, q, ev, NV, center=False, look=17, qstart=1):
        acc = self.ACC[gi % len(self.ACC)]
        for u in range(40):
            U = 40 * gi + u
            V = U + look
            for t in range(4):
                C = v(acc + 16 * t, 16)
                e(f"v_mfma_f32_32x32x16_bf16 {C}, {a(self.FR+16*(U%3)+4*t,4)}, {self.A(u)}, {'0' if u == 0 else C}")
                b = 5
                if U + 2 < NV:
                    self.q_read(e, U + 2, t, 0)
                    self.q_read(e, U + 2, t, 1)
                    b -= 2
                if t == 1 and self.dma_next <= V and self.dma_next < NV:
                    self.q_dma(e, self.dma_next)
                    self.dma_next += 1
                    b -= 1
                for fn, cost in ev.get((u, t), []):
                    fn(e)
                    b -= cost
                last = t == 3
                bar = last and (U & 3) == 1 and U + 3 < NV
                if last:
                    b -= 2 if bar else 1
                pre = t == 0 and self.dma_next <= V and self.dma_next < NV
                if pre and (self.m0key != ("q", self.dma_next >> 2)):
                    b -= 1
                if u * 4 + t >= qstart:
                    self.fill(e, q, b, True)
                if pre:
                    self.q_dma_pre(e, self.dma_next)
                if center and t == 0 and (u & 3) == 0 and u < 36:
                    assert not q, ("centering queue not drained", u, len(q))
                    self.center_mfma(e, u // 4 + 1)
                    self.pend_center = self.center_valu(u // 4 + 1)
                if center and t == 1 and (u & 3) == 0 and u < 36:
                    q += self.pend_center
                if last:
                    e.wait(vm=("w", (U + 3) >> 2) if bar else None, lg=("r", U + 1))
                    if bar:
                        e("s_barrier")
                        for fn in ev.get(("bar", u), []):
                            fn(e)

    def quad_start(self, e, U0):
        e.wait(vm=("w", U0 >> 2), lg="all")
        e("s_barrier")
        for U in (U0, U0 + 1):
            for t in range(4):
                self.q_read(e, U, t, 0)
                self.q_read(e, U, t, 1)

    def epi_gu(self, acc, Qadd, pk=False):
        q = []
        q.append((f"s_add_u32 s{sT1}, s{sID}, {Qadd}", 1))
        q.append((f"s_lshl_b32 s{sT1}, s{sT1}, 13", 1))
        q.append((f"s_add_u32 s{sT1}, s{sT1}, s{sHB}", 1))
        q.append((f"s_add_u32 s{sT2}, s{sT1}, 4096", 1))
        for th in range(2):
            G, U_ = acc + 32 * th, acc + 32 * th + 16
            stages = []
            for r in range(16):
                g, u_ = G + r, U_ + r
                stages.append([
                    (f"v_mul_f32 v{u_}, v{g}, v{u_}", 1),
                    (f"v_mul_f32 v{g}, v{self.vK1}, v{g}", 1),
                    (f"v_exp_f32 v{g}, v{g}", 2),
                    (f"v_fma_f32 v{g}, v{g}, v{self.vC}, v{self.vC}", 1),
                    (f"v_rcp_f32 v{g}, v{g}", 2),
                    (f"v_mul_f32 v{u_}, v{u_}, v{g}", 1),
                ])
            for i in range(16 + 4):
                for k, off in ((0, 0), (4, 2), (1, 0), (3, 1), (2, 0), (5, 3)):
                    r = i - off
                    if 0 <= r < 16:
                        q.append(stages[r][k])
                r = i - 4
                if r >= 0 and r & 1:
                    c = r >> 3
                    q.append((f"v_cvt_pk_bf16_f32 v{G+8*c+((r&7)>>1)}, v{U_+r-1}, v{U_+r}", 1))
                    if (r & 7) == 7:
                        q.append((lambda e, G=G, c=c, th=th: e.vm(
                            f"buffer_store_dwordx4 {v(G+8*c,4)}, v{self.vHS}, s[{S_WS}:{S_WS+3}], s{(sT1,sT2)[th]} offen offset:{c*512} sc1", "h"), 1, "mem"))
        return q

    def phi_items(self, src, kreg, dst, ntmp=4):
        T = self.vT
        q = []
        for i in range(16 + 3):
            r = i
            if r < 16:
                q.append((f"v_mul_f32 v{src+r}, v{kreg(r)}, v{src+r}", 1))
            r = i - 2
            if 0 <= r < 16:
                q.append((f"v_fmac_f32 v{T+r%ntmp}, s{sLN2}, v{src+r}", 1))
            r = i - 3
            if 0 <= r < 16 and r & 1:
                q.append((f"v_cvt_pk_bf16_f32 v{dst+(r>>1)}, v{T+(r-1)%ntmp}, v{T+r%ntmp}", 1))
                if (r & 7) == 7:
                    q.append((None, r >> 3))
            r = i
            if r < 16:
                q.append((f"v_exp_f32_e64 v{T+r%ntmp}, v{src+r} clamp", 2))
            r = i - 1
            if 0 <= r < 16:
                q.append((f"v_max_f32 v{src+r}, s{sEPS}, v{src+r}", 1))
        return q

    def epi_q(self, acc):
        q = []
        q.append((f"s_lshl_b32 s{sT1}, s{sRB}, 2", 1))
        q.append((f"s_add_u32 s{sT1}, s{sT1}, s{sW}", 1))
        q.append((f"s_mul_i32 s{sT1}, s{sT1}, 5", 1))
        q.append((f"s_add_u32 s{sT1}, s{sT1}, s{sID}", 1))
        q.append((f"s_lshl_b32 s{sT1}, s{sT1}, 13", 1))
        q.append((f"s_add_u32 s{sT1}, s{sT1}, {WS_PQ}", 1))
        q.append((f"s_add_u32 s{sT2}, s{sT1}, 4096", 1))
        for t in range(4):
            mat, th = t & 1, t >> 1
            src = acc + 16 * t
            for it in self.phi_items(src, lambda r: self.vK2, src, 6):
                if it[0] is None:
                    c = it[1]
                    q.append((lambda e, src=src, c=c, mat=mat, th=th: e.vm(
                        f"buffer_store_dwordx4 {v(src+4*c,4)}, v{self.vL16}, s[{S_WS}:{S_WS+3}], s{(sT1,sT2)[mat]} offen offset:{(2*th+c)*1024} sc1", "h"), 1, "mem"))
                else:
                    q.append(it)
        return q

    def drain(self, e, q):
        for it in q:
            if callable(it[0]):
                it[0](e)
            else:
                e(it[0])
        q.clear()

    def init_poll_text(self):
        return f"buffer_load_dword v{self.vPOLL}, v{self.vPOLL2}, s[{S_DBG}:{S_DBG+3}], 0 offen sc1"

    def signal(self, e, soff):
        e.vm(f"buffer_atomic_add v{self.vONE}, v{self.vSIG}, s[{S_WS}:{S_WS+3}], s{soff} offen", "sig")

    def path_A(self):
        e = Emit()
        self.stamp = st = Stamper(e, self.vST)
        self.slot0 = 0
        e.label("L_A")
        st()
        q = self.prologue(e)
        self.quad_start(e, 0)
        self.drain(e, q)
        e.wait(lg=("r", 0))
        st()
        self.dma_next = 17
        ev = {}
        self.pack_events(ev)
        self.quad(e, 0, q, ev, 120, center=True)
        assert not q
        st()
        e(f"s_cmp_lt_u32 s{sID}, 5\ns_cbranch_scc1 L_Aq")
        save = (self.dma_next, self.m0key)
        eq = e.fork()
        q = self.epi_gu(self.ACC[0], 11)
        self.quad(e, 1, q, {}, 120)
        assert not q, len(q)
        e.label("L_A3")
        self.dma_next, self.m0key = save
        eq.label("L_Aq")
        q = self.epi_q(self.ACC[0])
        ev = {(1, 2): [(lambda e: e(f"v_lshlrev_b32 v{self.vPOLL2}, 2, v{self.vLANE}"), 1)],
              (2, 2): [(lambda e: e.vm(self.init_poll_text(), "poll"), 1)]}
        self.quad(eq, 1, q, ev, 120)
        nleft = len(q)
        self.drain(eq, q)
        print("q-epilogue overflow items:", nleft, file=sys.stderr)
        assert not eq.pending_vm("poll")
        poll_check(eq, self.vPOLL, 1, self.init_poll_text())
        eq("s_branch L_A3")
        def norm(vq):
            return [t for t, m in vq if isinstance(t, tuple)]
        assert norm(e.vmq) == norm(eq.vmq), (e.vmq, eq.vmq)
        assert e.lgq == eq.lgq
        e.vmq = [(t, False) for t in norm(e.vmq)] + [("hq", True)]
        st()
        q = self.epi_gu(self.ACC[1], 0)

        def sig_pq(e):
            assert not e.pending_vm("hq")
            self.signal(e, sT3)

        ev = {(2, 2): [(lambda e: e(f"s_lshl_b32 s{sT3}, s{sRB}, 7\ns_add_u32 s{sT3}, s{sT3}, {CNT_PQ}"), 2)],
              (3, 2): [(lambda e: e(f"s_cmp_lt_u32 s{sID}, 5\ns_cselect_b32 s{sT3}, s{sT3}, {OOB}"), 2)],
              (5, 2): [(lambda e: e.wait(vm="hq"), 1)],
              (6, 0): [(sig_pq, 1)]}
        self.quad(e, 2, q, ev, 120)
        assert not q, len(q)
        st()
        q = self.epi_gu(self.ACC[0], 19)
        e.nop(6)
        self.drain(e, q)
        st()
        if CFG["stamps"]:
            e("s_waitcnt vmcnt(0)")
        st.finish(e, 0, self.vT)
        e("s_endpgm")
        lines = e.lines + eq.lines + e.slow + eq.slow + ["L_endA:"]
        i1, i2 = e.lines.index("s_cbranch_scc1 L_Aq"), e.lines.index("L_A3:")
        errs = check_hazards(e.lines, "A") + check_hazards(e.lines[i1-60:i1+1] + eq.lines + e.lines[i2:i2+60], "Aq")
        return lines, errs

    def path_B(self):
        e = Emit()
        self.stamp = st = Stamper(e, self.vST)
        self.slot0 = 3
        T = self.vT
        L = self.vLANE
        e.label("L_B")
        st()
        q = self.prologue(e)
        e.wait(vm=("kw", 0), lg="all")
        e("s_barrier")
        for u in (0, 1):
            for t in range(5):
                self.kv_read(e, u, t, 0)
                self.kv_read(e, u, t, 1)
            if u == 0:
                self.drain(e, q)
        e.wait(lg=("r", 0))
        st()
        plan = []
        for S in range(4, 10):
            for i in range(5):
                plan.append(("kv", S, i, 0 if S < 8 else 4 * (S - 6) - 2))
        for V in range(8):
            plan.append(("q", V, 0, 18))
        acc = self.KVACC
        for u in range(40):
            for t in range(5):
                C = v(acc + 16 * t, 16)
                e(f"v_mfma_f32_32x32x16_bf16 {C}, {self.A(u)}, {a(self.FR+20*(u%3)+4*t,4)}, {'0' if u == 0 else C}")
                b = 5
                if u + 2 < 40:
                    self.kv_read(e, u + 2, t, 0)
                    self.kv_read(e, u + 2, t, 1)
                    b -= 2
                dslot = t == 1 or (t == 3 and (u & 1) == 0)
                pslot = t == 0 or (t == 2 and (u & 1) == 0)
                if dslot and plan and plan[0][3] <= u:
                    p = plan.pop(0)
                    if p[0] == "kv":
                        assert self.m0key == ("kv", p[1], p[2] >> 2)
                        self.kv_dma(e, p[1], p[2])
                    else:
                        self.q_dma(e, p[1])
                    b -= 1
                if u == 30 and t == 2:
                    e(f"v_lshlrev_b32 v{self.vPOLL2}, 2, v{L}")
                    b -= 1
                if u == 31 and t == 2:
                    e.vm(self.init_poll_text(), "poll")
                    b -= 1
                last = t == 4
                bar = last and (u & 3) == 1 and u + 3 < 40
                if last:
                    b -= 2 if bar else 1
                if pslot:
                    b -= 1
                self.fill(e, q, b, True)
                if pslot and plan and plan[0][3] <= u:
                    p = plan[0]
                    if p[0] == "kv":
                        self.kv_m0(e, p[1], p[2])
                    else:
                        self.q_dma_pre(e, p[1])
                if t == 0 and (u & 3) == 0 and u < 36:
                    assert not q
                    self.center_mfma(e, u // 4 + 1)
                if t == 1 and (u & 3) == 0 and u < 36:
                    q += self.center_valu(u // 4 + 1)
                if last:
                    e.wait(vm=("kw", (u + 3) >> 2) if bar else None, lg=("r", u + 1))
                    if bar:
                        e("s_barrier")
        assert not plan and not q
        st()
        e(f"s_getpc_b64 s[{sT0}:{sT1}]")
        e.label("L_tabpc")
        e(f"s_mul_i32 s{sT2}, s{sW}, 96\ns_add_u32 s{sT2}, s{sT2}, kvtab-L_tabpc")
        e(f"s_add_u32 s{sT0}, s{sT0}, s{sT2}\ns_addc_u32 s{sT1}, s{sT1}, 0")
        MSK, TAB = 44, 72
        e(f"s_load_dwordx16 s[{MSK}:{MSK+15}], s[{sT0}:{sT1}], 0\ns_load_dwordx8 s[{TAB}:{TAB+7}], s[{sT0}:{sT1}], 64")
        XW = self.vKTR
        e(f"s_lshl_b32 s{sT2}, s{sW}, 11\ns_add_u32 s{sT2}, s{sT2}, {AUX}\nv_add_u32 v{XW}, s{sT2}, v{self.vL16}")
        e(f"v_and_b32 v{T+7}, 16, v{L}\nv_cmp_eq_u32 vcc, 0, v{T+7}\nv_mov_b32 v{T+7}, 0x3f803f80")
        K0, K1, T2, V0, V1 = [acc + 16 * i for i in range(5)]
        TB = self.ACC[0]

        def xw(tile, reg, c):
            e.lg(f"ds_write_b128 v{XW}, {v(reg,4)} offset:{tile*8192+c*1024}", "xw")

        def phi(src, tile):
            for it in self.phi_items(src, lambda r: self.RK + r, src, 6):
                if it[0] is None:
                    xw(tile, src + 4 * it[1], it[1])
                else:
                    e(it[0])

        def vsc(src, dst, tile, mask):
            for c in range(2):
                for r in range(8 * c, 8 * c + 8, 2):
                    e(f"v_pk_mul_f32 {v(dst+r,2)}, {v(src+r,2)}, {v(self.RV+r,2)}")
                for r in range(8 * c, 8 * c + 8, 2):
                    e(f"v_cvt_pk_bf16_f32 v{dst+8*c+((r&7)>>1)}, v{dst+r}, v{dst+r+1}")
                if mask:
                    for r in range(4):
                        e(f"v_cndmask_b32 v{dst+8*c+r}, v{dst+8*c+r}, v{T+7}, vcc")
                xw(tile, dst + 8 * c, c)

        phi(K0, 0)
        phi(K1, 1)
        vsc(T2, TB, 5, True)
        phi(T2, 2)
        vsc(V0, V0, 3, False)
        vsc(V1, V1, 4, False)
        e("s_waitcnt lgkmcnt(0)")
        e.lgq = []
        e("s_barrier")
        st()
        for i in range(4):
            e(f"v_add_u32 v{T+i}, s{TAB+4+i}, v{self.vL16}")
        XO = [("a", 0), ("a", 16), ("a", 32), ("a", 160), ("a", 176), ("a", 192), ("a", 208), ("a", 224)]
        R1, R2 = v(K0, 16), v(K1, 16)

        def xr(j):
            for i in range(4):
                e.lg(f"ds_read_b128 {R(XO[j],4*i,4)}, v{T+i} offset:{j*1024}", ("xr", j))

        xr(0), xr(1), xr(2)
        V = 8
        for j in range(8):
            e.wait(lg=("xr", j))
            e(f"v_mfma_f32_32x32x16_bf16 {R1}, {R(XO[j],0,4)}, {R(XO[j],4,4)}, {'0' if j == 0 else R1}")
            if j + 3 < 8:
                xr(j + 3)
            self.q_dma_pre(e, V)
            e(f"v_mfma_f32_32x32x16_bf16 {R2}, {R(XO[j],8,4)}, {R(XO[j],12,4)}, {'0' if j == 0 else R2}")
            self.q_dma(e, V)
            V += 1
        self.q_dma_pre(e, V)
        e(f"s_mul_i32 s{sT0}, s{sID}, {24*1024}\ns_add_u32 s{sT0}, s{sT0}, {WS_KV}")
        self.q_dma(e, V)
        self.dma_next = 17
        for i in range(4):
            e(f"s_add_u32 s{TAB+i}, s{TAB+i}, s{sT0}")
        e.wait(vm="poll")
        poll_check(e, self.vPOLL, 1, self.init_poll_text())
        self.quad_start(e, 0)
        for g in range(8):
            e(f"s_mov_b64 exec, s[{MSK+2*g}:{MSK+2*g+1}]")
            for r in range(4):
                e.vm(f"buffer_atomic_add_f32 v{K0+4*g+r}, v{self.vPOLL2}, s[{S_WS}:{S_WS+3}], s{TAB+(g>>1)} offen offset:{((g&1)*4+r)*256}", "at", maybe=True)
        e("s_mov_b64 exec, -1")
        e.wait(lg=("r", 0))
        st()
        cnt_kv, cnt_pq = sT4, sT5
        pkv = f"buffer_load_dword v{self.vPOLL}, off, s[{S_WS}:{S_WS+3}], s{cnt_kv} sc1"
        ppq = f"buffer_load_dword v{T+7}, off, s[{S_WS}:{S_WS+3}], s{cnt_pq} sc1"

        def sig_kv(e):
            assert not e.pending_vm("at")
            self.signal(e, cnt_kv)

        US = CFG.get("us", 13)
        ev = {(2, 2): [(lambda e: e(f"s_lshl_b32 s{cnt_kv}, s{sID}, 7\ns_add_u32 s{cnt_kv}, s{cnt_kv}, {CNT_KV}"), 2)],
              (3, 2): [(lambda e: e(f"s_lshl_b32 s{cnt_pq}, s{sRB}, 7\ns_add_u32 s{cnt_pq}, s{cnt_pq}, {CNT_PQ}"), 2)],
              (US, 2): [(lambda e: e.wait(vm="at"), 1)],
              (US + 1, 0): [(sig_kv, 1)],
              (34, 2): [(lambda e: e.vm(pkv, "p1"), 1), (lambda e: e.vm(ppq, "p2"), 1)]}
        q = []
        self.quad(e, 0, q, ev, 40)
        st()
        q = self.epi_gu(self.ACC[0], 8)
        nq = len(q) // 2
        q1, q2 = q[:nq], q[nq:]
        e.nop(6)
        self.drain(e, q1)
        e.wait(vm="p2")
        poll_check(e, self.vPOLL, 16, pkv)
        poll_check(e, T + 7, 5, ppq)
        st()
        KL = self.KVACC
        PQ = 0
        e(f"s_mul_i32 s{sT0}, s{sID}, {24*1024}\ns_mul_i32 s{sT3}, s{sW}, {6*1024}\ns_add_u32 s{sT0}, s{sT0}, s{sT3}\ns_add_u32 s{sT0}, s{sT0}, {WS_KV}")
        e(f"s_add_u32 s{sT3}, s{sT0}, 4096")
        for i in range(24):
            e.vm(f"buffer_load_dword v{KL+i}, v{self.vPOLL2}, s[{S_WS}:{S_WS+3}], s{sT0 if i < 16 else sT3} offen offset:{(i&15)*256} sc1", "kl")
        e(f"s_lshl_b32 s{sT0}, s{sRB}, 2\ns_add_u32 s{sT0}, s{sT0}, s{sW}\ns_lshl_b32 s{sT0}, s{sT0}, 3\ns_add_u32 s{sT0}, s{sT0}, s{sID}")
        e(f"s_mul_i32 s{sT0}, s{sT0}, 5120\ns_add_u32 s{sT0}, s{sT0}, {WS_PQ}\ns_add_u32 s{sT3}, s{sT0}, 4096")
        for i in range(5):
            e.vm(f"buffer_load_dwordx4 {a(PQ+4*i,4)}, v{self.vL16}, s[{S_WS}:{S_WS+3}], s{sT0 if i < 4 else sT3} offen offset:{(i&3)*1024} sc1", "pq")
        self.drain(e, q2)
        e(f"s_mul_i32 s{sT2}, s{sW}, 3072\ns_add_u32 s{sT2}, s{sT2}, {AUX}\nv_add_u32 v{XW}, s{sT2}, v{self.vL16}")
        e(f"v_add_u32 v{XW+1}, {AUX}, v{self.vL16}")
        e.wait(vm="kl")
        st()
        for f in range(3):
            for i in range(4):
                e(f"v_cvt_pk_bf16_f32 v{KL+8*f+i}, v{KL+8*f+2*i}, v{KL+8*f+2*i+1}")
            e.lg(f"ds_write_b128 v{XW}, {v(KL+8*f,4)} offset:{f*1024}", "kw")
        e.wait(lg="all")
        e("s_barrier")
        KF = 32
        order = [7, 8, 9, 10, 11, 0, 1, 2, 3, 4, 5, 6]
        ft = {0: (0, 0), 1: (0, 1), 2: (0, 2), 3: (1, 1), 4: (1, 2), 5: (1, 3), 6: (1, 4), 7: (2, 0), 8: (2, 1), 9: (2, 2), 10: (2, 3), 11: (2, 4)}
        for f in order:
            e.lg(f"ds_read_b128 {a(KF+4*f,4)}, v{XW+1} offset:{f*1024}", ("kf", f))
        O = [self.KVACC + 32, self.KVACC + 48, self.KVACC + 64]
        e(f"v_cmp_gt_u32 vcc, 32, v{L}")
        for b in range(5):
            e(f"s_mul_i32 s{sT0}, s{sID}, 5\ns_add_u32 s{sT0}, s{sT0}, {108+b}\ns_lshr_b32 s{sT1}, s{sT0}, 1\ns_lshl_b32 s{sT1}, s{sT1}, 12")
            e(f"s_and_b32 s{sT0}, s{sT0}, 1\ns_lshl_b32 s{sT0}, s{sT0}, 9\ns_add_u32 s{sT0}, s{sT0}, s{sT1}\ns_add_u32 s{TAB+b}, s{sT0}, s{sHB}")
        e.wait(vm="pq")
        seen = set()
        for n, f in enumerate(order):
            t, b = ft[f]
            e.wait(lg=("kf", f))
            C = v(O[t], 16)
            e(f"v_mfma_f32_32x32x16_bf16 {C}, {a(KF+4*f,4)}, {a(PQ+4*b,4)}, {C if t in seen else '0'}")
            seen.add(t)
        e.nop(1)
        D = O[2]
        for j in range(4):
            e(f"v_add_f32 v{D+j}, {f32(1e-6)}, v{D+j}")
        for j in range(4):
            e(f"v_rcp_f32 v{D+j}, v{D+j}")
        e(f"v_cndmask_b32 v{D+4}, v{D+1}, v{D}, vcc\ns_nop 0\nv_cndmask_b32 v{D+5}, v{D+3}, v{D+2}, vcc")
        rs = {(0, 0): D, (0, 1): D, (0, 2): D + 4, (0, 3): D + 1, (1, 0): D + 1, (1, 1): D + 2, (1, 2): D + 2, (1, 3): D + 5, (2, 2): D + 3, (2, 3): D + 3}
        for b, (t, c) in ((4, (2, 1)), (0, (0, 0)), (1, (0, 1)), (2, (1, 0)), (3, (1, 1))):
            base = O[t] + 8 * c
            for r in range(8):
                e(f"v_mul_f32 v{base+r}, v{rs[(t, 2*c+(r>>2))]}, v{base+r}")
            for r in range(4):
                e(f"v_cvt_pk_bf16_f32 v{base+r}, v{base+2*r}, v{base+2*r+1}")
            e.vm(f"buffer_store_dwordx4 {v(base,4)}, v{self.vHS}, s[{S_WS}:{S_WS+3}], s{TAB+b} offen sc1", "o")
        st()
        if CFG["stamps"]:
            e("s_waitcnt vmcnt(0)")
        st.finish(e, 0, self.vT)
        e("s_endpgm")
        lines = e.lines + e.slow + ["L_endB:"]
        return lines, check_hazards(e.lines, "B")


def kv_table():
    pairs = [(0, 3), (0, 4), (1, 3), (1, 4), (0, 5), (1, 5), (2, 4), (2, 5)]
    sigma = {(0, 0): 0, (0, 1): 1, (2, 0): 2, (1, 1): 3, (3, 0): 4, (3, 1): 5, (6, 0): 6,
             (4, 0): 7, (4, 1): 8, (5, 0): 9, (5, 1): 10, (7, 0): 11}
    words = []
    for w in range(4):
        masks, offs, tiles = [], [], []
        for p in (2 * w, 2 * w + 1):
            A_, B_ = pairs[p]
            for q4 in range(4):
                for hf in range(2):
                    m = 0
                    d = 32 * A_ + 8 * q4 + 4 * hf
                    if d < 80:
                        hd = d // 20
                        for j in range(32):
                            if B_ == 3:
                                ok = j // 20 == hd
                            elif B_ == 4:
                                ok = (32 + j) // 20 == hd
                            else:
                                ok = (j & 3) == hd if j < 8 else (False if j < 16 else hd == 3)
                            m |= int(ok) << j
                    if (p, q4 >> 1) not in sigma:
                        assert m == 0
                    masks.append(m)
            for half in range(2):
                offs.append(sigma.get((p, half), 0) * 2048)
            tiles += [AUX + A_ * 8192, AUX + B_ * 8192]
        words += masks + offs + tiles
    return words


def k1_entry():
    e = Emit()
    e("s_cmp_ge_u32 s2, 256\ns_cbranch_scc1 L_exit1")
    e(f"s_load_dwordx16 s[44:59], s[0:1], 0\ns_load_dwordx4 s[60:63], s[0:1], 64")
    e(f"v_and_b32 v1, 63, v0\nv_lshrrev_b32 v2, 6, v0")
    e(f"s_and_b32 s{sT0}, s2, 7\ns_lshr_b32 s{sT1}, s2, 3")
    e(f"v_readfirstlane_b32 s{sW}, v2")
    if CFG["map84"]:
        e(f"s_and_b32 s{sT2}, s{sT1}, 7\ns_lshr_b32 s{sT3}, s{sT1}, 3")
        e(f"s_and_b32 s{sRB}, s{sT0}, 1\ns_lshl_b32 s{sRB}, s{sRB}, 3\ns_add_u32 s{sRB}, s{sRB}, s{sT2}")
        e(f"s_and_b32 s{sID}, s{sT0}, 6\ns_and_b32 s{sT4}, s{sT3}, 1\ns_add_u32 s{sID}, s{sID}, s{sT4}")
        e(f"s_mul_i32 s{sT2}, s{sT2}, 5\ns_add_u32 s{sT2}, s{sT2}, 1\ns_lshr_b32 s{sT2}, s{sT2}, 2")
        e(f"s_mul_i32 s{sT4}, s{sT3}, 5\ns_add_u32 s{sT4}, s{sT4}, 1\ns_lshr_b32 s{sT4}, s{sT4}, 1")
        isb = 2
    else:
        e(f"s_and_b32 s{sT2}, s{sT1}, 3\ns_lshr_b32 s{sT3}, s{sT1}, 2")
        e(f"s_and_b32 s{sRB}, s{sT0}, 3\ns_lshl_b32 s{sRB}, s{sRB}, 2\ns_add_u32 s{sRB}, s{sRB}, s{sT2}")
        e(f"s_and_b32 s{sID}, s{sT0}, 4\ns_and_b32 s{sT4}, s{sT3}, 3\ns_add_u32 s{sID}, s{sID}, s{sT4}")
        e(f"s_mul_i32 s{sT2}, s{sT2}, 5\ns_add_u32 s{sT2}, s{sT2}, 1\ns_lshr_b32 s{sT2}, s{sT2}, 1")
        e(f"s_mul_i32 s{sT4}, s{sT3}, 5\ns_add_u32 s{sT4}, s{sT4}, 1\ns_lshr_b32 s{sT4}, s{sT4}, 2")
        isb = 4
    if CFG["rot"] == 1:
        e(f"s_add_u32 s{sRHO}, s{sT2}, s{sT4}\ns_cmp_ge_u32 s{sRHO}, 10\ns_cselect_b32 s{sT4}, 10, 0\ns_sub_u32 s{sRHO}, s{sRHO}, s{sT4}")
    elif CFG["rot"] == 2:
        e(f"s_mov_b32 s{sRHO}, s{sT2}")
    elif CFG["rot"] == 3:
        e(f"s_mov_b32 s{sRHO}, s{sT4}")
    else:
        e(f"s_mov_b32 s{sRHO}, 0")
    e(f"s_cmp_ge_u32 s{sT3}, {isb}\ns_cbranch_scc0 L_A\ns_branch L_B")
    e.label("L_exit1")
    e("s_endpgm")
    return e.lines


def k2():
    e = Emit()
    S_O = 8
    vL, vL16, vL16b, vO = 1, 2, 3, 4
    vAV = 8
    vRW = 12
    F, S_ = 16, 96
    XR = 176
    T = 188
    st = Stamper(e, 7)
    e("s_cmp_ge_u32 s2, 256\ns_cbranch_scc1 L_exit2")
    e(f"s_load_dwordx16 s[44:59], s[0:1], 0\ns_load_dwordx4 s[60:63], s[0:1], 64")
    st()
    e(f"v_and_b32 v{vL}, 63, v0\nv_lshrrev_b32 v2, 6, v0")
    e(f"s_and_b32 s{sT0}, s2, 7\ns_lshr_b32 s{sT1}, s2, 3")
    e(f"v_readfirstlane_b32 s{sW}, v2")
    e(f"s_lshl_b32 s{sRB}, s{sT0}, 2\ns_lshr_b32 s{sT2}, s{sT1}, 3\ns_add_u32 s{sRB}, s{sRB}, s{sT2}\ns_and_b32 s{sID}, s{sT1}, 7")
    e(f"v_lshlrev_b32 v{vL16}, 4, v{vL}\nv_add_u32 v{vL16b}, 4096, v{vL16}")
    for i in range(4):
        e(f"s_add_u32 s{sT0}, s{sW}, {i}\ns_and_b32 s{sT0}, s{sT0}, 3\ns_lshl_b32 s{sT1}, s{sT0}, 10\nv_add_u32 v{vAV+i}, s{sT1}, v{vL16}")
        if i:
            e(f"s_mul_i32 s{sT1}, s{sT0}, 15360\ns_add_u32 s{sT1}, s{sT1}, {(i-1)*5120}\nv_add_u32 v{vRW+i-1}, s{sT1}, v{vL16}")
        else:
            e(f"s_mul_i32 s{sT1}, s{sT0}, 15360\nv_add_u32 v{vRW+3}, s{sT1}, v{vL16}")
    sA, sB, sA9, sB9, sa, sb = 24, 25, 26, 27, 28, 29
    e(f"s_mul_i32 s{sA}, s{sRB}, 74\ns_add_u32 s{sA}, s{sA}, s{sW}\ns_lshl_b32 s{sA}, s{sA}, 12")
    e(f"s_mul_i32 s{sB}, s{sID}, 74\ns_add_u32 s{sB}, s{sB}, s{sW}\ns_mul_i32 s{sB}, s{sB}, 5120\ns_add_u32 s{sB}, s{sB}, {WS_B2}")
    e(f"s_cmp_lt_u32 s{sW}, 2\ns_cselect_b32 s{sA9}, s{sA}, {OOB}\ns_cselect_b32 s{sB9}, s{sB}, {OOB}")
    e("s_waitcnt lgkmcnt(0)")
    srd(e, S_WS, P_WS, WS_SIZE)
    NS = 19
    D = CFG.get("depth", 3)

    def ks0(i):
        return 4 * i if i < 10 else 54 + 4 * (i - 10) if i < 15 else 38 + 4 * (i - 15)

    def loads(i):
        fb = 36 * (i % (D + 1))
        it = [f"s_add_u32 s{sa}, s{sA9 if i == 9 else sA}, {ks0(i)*4096}", f"s_add_u32 s{sb}, s{sB9 if i == 9 else sB}, {ks0(i)*5120}"]
        m = []
        for j in range(5):
            m.append(f"buffer_load_dwordx4 {a(fb+16+4*j,4)}, v{vL16 if j < 4 else vL16b}, s[{S_WS}:{S_WS+3}], s{sb} offen offset:{(j&3)*1024}")
            if j < 4:
                m.append(f"buffer_load_dwordx4 {a(fb+4*j,4)}, v{vAV+j}, s[{S_WS}:{S_WS+3}], s{sa} offen")
        return it, m

    for i in range(D):
        it, m = loads(i)
        for x in it:
            e(x)
        for x in m:
            e.vm(x, ("l", i))
    srd(e, S_X, P_X, 2048 * 1280)
    srd(e, S_O, P_OUT, 2048 * 1280)
    e(f"v_and_b32 v{T}, 15, v{vL}\nv_mul_u32_u24 v{T}, 1280, v{T}\nv_lshrrev_b32 v{T+1}, 4, v{vL}\nv_lshl_add_u32 v{vO}, v{T+1}, 3, v{T}")
    sO = 30
    e(f"s_lshl_b32 s{sO}, s{sRB}, 2\ns_add_u32 s{sO}, s{sO}, s{sW}\ns_mul_i32 s{sO}, s{sO}, {16*1280}\ns_mul_i32 s{sT0}, s{sID}, 160\ns_add_u32 s{sO}, s{sO}, s{sT0}")
    for i in range(3):
        e(f"v_add_u32 v{T+4+i}, {61440}, v{vRW+i}")
    e(f"v_add_u32 v{T+7}, {61440}, v{vRW+3}")
    st()
    for i in range(NS):
        fb = 36 * (i % (D + 1))
        acc = S_ if 10 <= i < 15 else F
        first = i in (0, 10)
        q = []
        if i + D < NS:
            it, m = loads(i + D)
            q = [(x, None) for x in it] + [(x, ("l", i + D)) for x in m]
        if i == 12:
            q += [(f"buffer_load_dwordx2 {v(XR+2*j,2)}, v{vO}, s[{S_X}:{S_X+3}], s{sO} offen offset:{32*j}", "x") for j in range(5)]
        w = []
        if 15 <= i < 18:
            k = i - 14
            w = [f"ds_write_b128 v{T+4+k-1}, {v(S_+20*k+4*j,4)} offset:{j*1024}" for j in range(5)]
        e.wait(vm=("l", i))
        if i == 0:
            st()
        order = [(tt, j) for tt in (1, 2, 3, 0) for j in range(5)]
        for n, (tt, j) in enumerate(order):
            C = v(acc + 20 * tt + 4 * j, 4)
            e(f"v_mfma_f32_16x16x32_bf16 {C}, {a(fb+16+4*j,4)}, {a(fb+4*tt,4)}, {'0' if first else C}")
            if q:
                x, tag = q.pop(0)
                if tag is None:
                    e(x)
                else:
                    e.vm(x, tag)
            elif w and n >= 10 and n % 2 == 0:
                e.lg(w.pop(0), "w")
            if i == NS - 1 and n >= 9:
                k, jj = divmod(n - 9, 5)
                e.lg(f"ds_write_b128 v{vRW+k}, {v(F+20*(k+1)+4*jj,4)} offset:{jj*1024}", "w")
        for x in w:
            e.lg(x, "w")
        assert not q
    for n in range(11, 15):
        k, jj = divmod(n, 5)
        e.lg(f"ds_write_b128 v{vRW+k}, {v(F+20*(k+1)+4*jj,4)} offset:{jj*1024}", "w")
    st()
    e.wait(lg="all")
    e("s_barrier")
    for j in range(5):
        for k in range(3):
            e.lg(f"ds_read_b128 {v(F+20+20*k+4*j,4)}, v{vRW+3} offset:{k*5120+j*1024}", ("f", j))
        for k in range(3):
            e.lg(f"ds_read_b128 {v(S_+20+20*k+4*j,4)}, v{T+7} offset:{k*5120+j*1024}", ("f", j))
        if j == 1:
            e.wait(vm="x")
    e(f"s_mov_b32 s{sT0}, {f32(-LOG2E)}")
    for j in range(5):
        e.wait(lg=("f", j))
        f, s_ = F + 4 * j, S_ + 4 * j
        for base in (f, s_):
            for h in (0, 2):
                e(f"v_pk_add_f32 {v(base+h,2)}, {v(base+h,2)}, {v(base+20+h,2)}")
                e(f"v_pk_add_f32 {v(base+40+h,2)}, {v(base+40+h,2)}, {v(base+60+h,2)}")
            for h in (0, 2):
                e(f"v_pk_add_f32 {v(base+h,2)}, {v(base+h,2)}, {v(base+40+h,2)}")
        t = f + 20
        x = s_ + 20
        for r in range(4):
            e(f"v_mul_f32 v{t+r}, s{sT0}, v{f+r}")
        for r in range(4):
            e(f"v_exp_f32 v{t+r}, v{t+r}")
        for h in (0, 2):
            e(f"v_pk_mul_f32 {v(f+h,2)}, {v(f+h,2)}, {v(s_+h,2)}")
        for r in range(4):
            e(f"v_add_f32 v{t+r}, 1.0, v{t+r}")
        for r in range(4):
            e(f"v_rcp_f32 v{t+r}, v{t+r}")
        for h in range(2):
            e(f"v_lshlrev_b32 v{x+2*h}, 16, v{XR+2*j+h}\nv_and_b32 v{x+2*h+1}, 0xffff0000, v{XR+2*j+h}")
        for h in (0, 2):
            e(f"v_pk_fma_f32 {v(f+h,2)}, {v(f+h,2)}, {v(t+h,2)}, {v(x+h,2)}")
        e(f"v_cvt_pk_bf16_f32 v{f}, v{f}, v{f+1}\nv_cvt_pk_bf16_f32 v{f+1}, v{f+2}, v{f+3}")
        e.vm(f"buffer_store_dwordx2 {v(f,2)}, v{vO}, s[{S_O}:{S_O+3}], s{sO} offen offset:{32*j}", "o")
    st()
    if CFG["stamps"]:
        e("s_waitcnt vmcnt(0)")
    st.finish(e, 1, T)
    e.label("L_exit2")
    e("s_endpgm")
    return e.lines, check_hazards(e.lines, "K2")


def kd(name, nv, acc):
    return f""".p2align 6
.amdhsa_kernel {name}
  .amdhsa_next_free_vgpr {nv}
  .amdhsa_next_free_sgpr 102
  .amdhsa_accum_offset {acc}
  .amdhsa_group_segment_fixed_size 0
  .amdhsa_kernarg_size 80
  .amdhsa_user_sgpr_count 2
  .amdhsa_user_sgpr_kernarg_segment_ptr 1
  .amdhsa_system_sgpr_workgroup_id_x 1
  .amdhsa_float_denorm_mode_32 3
.end_amdhsa_kernel
"""


def main():
    la, ea = K1("A").path_A()
    lb, eb = K1("B").path_B()
    l2, e2 = k2()
    errs = ea + eb + e2 + check_hazards(k1_entry(), "entry")
    for x in errs:
        print(x, file=sys.stderr)
    out = []
    out.append("; @launch kernel=p1_kernel grid=(256,1,1) block=(256,1,1) lds=163840")
    out.append("; @launch kernel=p2_kernel grid=(256,1,1) block=(256,1,1) lds=122880")
    out.append('.amdgcn_target "amdgcn-amd-amdhsa--gfx950"\n.text')
    out.append(".globl p1_kernel\n.p2align 8\n.type p1_kernel,@function\np1_kernel:")
    out += k1_entry()
    out.append(".p2align 6")
    out += la
    out.append("s_endpgm\n.p2align 6")
    out += lb
    out.append("s_endpgm\n.p2align 6\n.type kvtab,@object\nkvtab:")
    tab = kv_table()
    for i in range(0, len(tab), 8):
        out.append(".long " + ", ".join("0x%08x" % x for x in tab[i:i + 8]))
    out.append(f".size kvtab, {4*len(tab)}")
    out.append(".globl p2_kernel\n.p2align 8\n.type p2_kernel,@function\np2_kernel:")
    out += l2
    out.append('.section .rodata,"a"')
    out.append(kd("p1_kernel", 512, 256))
    out.append(kd("p2_kernel", 512, 256))
    open(sys.argv[1], "w").write("\n".join(out))
    print("lines", len(la), len(lb), len(l2), "hazards", len(errs), file=sys.stderr)


main()
```

```python
import sys, struct, math
from emit import *

NAME = "recurrent_scan__linear_attn_block__swiglu_ffn__prompt"
CFG = dict(map84=1, rot=1, stamps=0, codepf=1)
for arg in sys.argv[2:]:
    k, val = arg.split("=")
    CFG[k] = int(val)

WS_A2 = 0
WS_B2 = 0xA00000
WS_PQ = 0xD00000
WS_KV = 0x1000000
WS_CNT = WS_KV + 192 * 1024
WS_ST = WS_CNT + 16 * 1024
WS_SIZE = 0x1100000
OOB = 0x40000000
CNT_KV = WS_CNT
CNT_PQ = WS_CNT + 8 * 128
AUX = 80 * 1024


def f32(x):
    return "0x%08x" % struct.unpack("<I", struct.pack("<f", x))[0]


LOG2E = 1.4426950408889634
LN2 = 0.6931471805599453

S_X, S_W, S_WS, S_DBG, S_P = 4, 8, 12, 16, 20
SEG1, SEG2 = 24, 34
P_X, P_QKV, P_WO, P_BX, P_G, P_U, P_D, P_OUT, P_DBG, P_WS = range(44, 64, 2)
sW, sRB, sID, sRHO, sT0, sT1, sT2, sT3 = range(64, 72)
XOFF = 72
sW4K, sHB, sLN2, sEPS, sGU0, sGU1 = 82, 83, 84, 85, 86, 87
PKST = 88
sPK0, sPK1 = 3, 98
sSTAMP = 96
sSPIN = 99
sT4, sT5 = 100, 101


def srd(e, r, ptr, size):
    e(f"s_mov_b32 s{r}, s{ptr}\ns_mov_b32 s{r+1}, s{ptr+1}\ns_mov_b32 s{r+2}, {size}\ns_mov_b32 s{r+3}, 0x20000")


class Stamper:
    def __init__(self, e, vreg):
        self.e, self.v, self.n = e, vreg, 0

    def __call__(self, e=None):
        if not CFG["stamps"]:
            return
        e = e or self.e
        if self.n > 0:
            e(f"v_writelane_b32 v{self.v}, s{sSTAMP}, {self.n-1}")
        else:
            e(f"s_memrealtime vcc")
        e(f"s_memtime s[{sSTAMP}:{sSTAMP+1}]")
        if self.n == 1:
            e(f"v_writelane_b32 v{self.v}, vcc_lo, 62")
        self.n += 1

    def finish(self, e, kern, vtmp):
        if not CFG["stamps"]:
            return
        self(e)
        e(f"s_memrealtime vcc\ns_waitcnt lgkmcnt(0)\nv_writelane_b32 v{self.v}, s{sSTAMP}, {self.n-1}\nv_writelane_b32 v{self.v}, vcc_lo, 63\nv_writelane_b32 v{self.v}, {self.n}, 61")
        e(f"v_mbcnt_lo_u32_b32 v{vtmp}, -1, 0\nv_mbcnt_hi_u32_b32 v{vtmp}, -1, v{vtmp}\nv_lshlrev_b32 v{vtmp}, 2, v{vtmp}")
        e(f"s_lshl_b32 s{sT0}, s2, 2\ns_add_u32 s{sT0}, s{sT0}, s{sW}\ns_lshl_b32 s{sT0}, s{sT0}, 8")
        e(f"s_add_u32 s{sT0}, s{sT0}, {WS_ST + kern*262144}")
        e(f"buffer_store_dword v{self.v}, v{vtmp}, s[{S_WS}:{S_WS+3}], s{sT0} offen")


_lbl = [0]


def poll_check(e, vreg, target, load_text, mode="ge"):
    _lbl[0] += 1
    n = _lbl[0]
    cmp_ = f"v_cmp_gt_u32 vcc, {target}, v{vreg}"
    e(cmp_)
    e(f"s_cbranch_vccnz L_spin{n}")
    e.label(f"L_back{n}")
    e.slow += [f"L_spin{n}:", f"s_mov_b32 s{sSPIN}, 0", f"L_spinl{n}:", load_text, f"s_add_u32 s{sSPIN}, s{sSPIN}, 1",
               f"s_cmp_gt_u32 s{sSPIN}, 0x40000", f"s_cbranch_scc1 L_spinx{n}", "s_waitcnt vmcnt(0)", cmp_,
               f"s_cbranch_vccnz L_spinl{n}", f"L_spinx{n}:", "s_waitcnt vmcnt(0)", f"s_branch L_back{n}"]


class K1:
    def __init__(self, typ):
        self.typ = typ
        B = typ == "B"
        self.vLANE, self.vHS, self.vL16, self.vK1, self.vC, self.vK2 = 1, 2, 3, 4, 5, 6
        self.vTR = 8
        self.vWV2 = 12
        self.vT = 16
        self.vPOLL, self.vSIG, self.vONE, self.vPOLL2, self.vST = 24, 25, 26, 27, 28
        self.vKTR = 29
        if not B:
            self.ACC = [32, 96]
            self.TMP = 96
            self.ARCH = [0, 5, 6, 7, 8, 9]
            self.AARCH = 160
        else:
            self.KVACC = 32
            self.ACC = [112]
            self.TMP = 112
            self.RV, self.RK = 176, 192
            self.ARCH = [0, 1, 2]
            self.AARCH = 208
        T = self.TMP
        self.vCT = T
        self.vID = T + 32
        self.vONES = T + 34
        self.vNM = T + 36
        self.vWV1 = T + 40
        self.vXV = T + 48
        self.vPA = T + 52
        self.vXR = T + 56
        self.FR = 160
        self.m0key = None

    def A(self, u):
        S = u >> 2
        return v(self.AARCH + 16 * self.ARCH.index(S) + 4 * (u & 3), 4) if S in self.ARCH else a(4 * u, 4)

    def set_m0(self, e, key, text):
        if self.m0key != key:
            e(text)
            self.m0key = key
            return 1
        return 0

    def prologue(self, e):
        B = self.typ == "B"
        L = self.vLANE
        T = self.vT
        st = self.stamp
        e(f"v_lshrrev_b32 v{T}, 3, v{L}")
        e(f"v_and_b32 v{T+1}, 7, v{L}")
        e(f"v_lshrrev_b32 v{T+2}, 1, v{T}")
        e(f"v_xor_b32 v{T+2}, v{T+1}, v{T+2}")
        e(f"v_mul_u32_u24 v{T+3}, 1280, v{T}")
        e(f"v_lshl_add_u32 v{self.vXV}, v{T+2}, 4, v{T+3}")
        e(f"v_xor_b32 v{self.vXV+1}, 64, v{self.vXV}")
        e(f"v_add_u32 v{self.vXV+2}, {2*9216}, v{self.vXV}")
        e(f"v_add_u32 v{self.vXV+3}, {3*9216}, v{self.vXV+1}")
        e(f"v_add_u32 v{self.vXV+1}, {9216}, v{self.vXV+1}")
        e(f"s_lshl_b32 s{sT0}, s{sRB}, 2\ns_add_u32 s{sT0}, s{sT0}, s{sW}\ns_mul_i32 s{sT0}, s{sT0}, {32*1280}")
        e(f"s_mov_b32 s{sT1}, s{sRHO}")
        for i in range(10):
            e(f"s_lshl_b32 s{sT2}, s{sT1}, 7\ns_add_u32 s{XOFF+i}, s{sT0}, s{sT2}\ns_mov_b32 s{SEG2+i}, s{sT1}")
            if i < 9:
                e(f"s_add_u32 s{sT1}, s{sT1}, 1\ns_cmp_eq_u32 s{sT1}, 10\ns_cselect_b32 s{sT1}, 0, s{sT1}")
        e(f"s_mul_i32 s{sT3}, s{sW}, {20*1024}\ns_add_u32 s{sT3}, s{sT3}, {AUX}")
        e("s_waitcnt lgkmcnt(0)")
        st()
        srd(e, S_X, P_X, 2048 * 1280)

        def xdma(i):
            e(f"s_add_u32 m0, s{sT3}, {(i % 5) * 4096}")
            self.m0key = None
            e("s_nop 0")
            for j in range(4):
                e.vm(f"buffer_load_dwordx4 v{self.vXV+j}, s[{S_X}:{S_X+3}], s{XOFF+i} offen offset:{j*1024} lds", ("x", i))

        xdma(0)
        xdma(1)
        srd(e, S_WS, P_WS, WS_SIZE)
        srd(e, S_DBG, P_DBG, 256)
        e(f"v_lshlrev_b32 v{self.vL16}, 4, v{L}")
        e(f"v_mov_b32 v{self.vONE}, 1")
        if CFG["codepf"]:
            e(f"s_getpc_b64 s[{S_P}:{S_P+1}]")
            e.label(f"L_pc{self.typ}")
            e(f"s_mov_b32 s{S_P+2}, L_end{self.typ}-L_pc{self.typ}\ns_mov_b32 s{S_P+3}, 0x20000")
            e(f"s_lshr_b32 s{sT0}, s2, 3\ns_and_b32 s{sT0}, s{sT0}, 7\ns_lshl_b32 s{sT0}, s{sT0}, 2\ns_add_u32 s{sT0}, s{sT0}, s{sW}")
            e(f"s_lshl_b32 s{sT0}, s{sT0}, 11")
            e(f"v_and_b32 v{T+4}, 15, v{L}\nv_lshlrev_b32 v{T+4}, 7, v{T+4}")
            e.vm(f"buffer_load_dword v{T+5}, v{T+4}, s[{S_P}:{S_P+3}], s{sT0} offen", "cpf")
        if B:
            e(f"s_lshl_b32 s{sT0}, s{sID}, 3\ns_add_u32 s{sT0}, s{sT0}, s{sRB}")
            e(f"s_lshr_b32 s{sT1}, s{sRB}, 3\ns_or_b32 s{sT1}, s{sT1}, s{sW}")
            e(f"s_mul_i32 s{sT2}, s{sT0}, 3072\ns_add_u32 s{sT2}, s{sT2}, {WS_KV}")
            e(f"s_lshl_b32 s{sT4}, s{sT0}, 8\ns_add_u32 s{sT4}, s{sT4}, {WS_CNT}")
            e(f"s_lshl_b32 s{sT5}, s{sT0}, 2")
            e(f"s_cmp_eq_u32 s{sT1}, 0")
            e(f"s_cselect_b32 s{sT2}, s{sT2}, {OOB}\ns_cselect_b32 s{sT4}, s{sT4}, {OOB}\ns_cselect_b32 s{sT5}, s{sT5}, {OOB}")
            for i in range(4):
                e(f"v_mov_b32 v{self.RV+i}, 0")
            e(f"v_lshlrev_b32 v{T+6}, 2, v{L}")
            for i in range(3):
                e.vm(f"buffer_store_dwordx4 v[{self.RV}:{self.RV+3}], v{self.vL16}, s[{S_WS}:{S_WS+3}], s{sT2} offen offset:{i*1024} sc1", "init")
            e.vm(f"buffer_store_dword v{self.RV}, v{T+6}, s[{S_WS}:{S_WS+3}], s{sT4} offen sc1", "init")
        st()
        e(f"v_and_b32 v{T}, 31, v{L}\nv_lshrrev_b32 v{T+1}, 5, v{L}")
        e(f"v_bfe_u32 v{T+2}, v{L}, 1, 3\nv_xor_b32 v{T+2}, v{T+2}, v{T+1}")
        e(f"v_lshlrev_b32 v{T}, 7, v{T}\nv_lshl_add_u32 v{T}, v{T+2}, 4, v{T}")
        for i in range(1, 4):
            e(f"v_xor_b32 v{self.vXR+i}, {32*i}, v{T}\nv_add_u32 v{self.vXR+i}, s{sT3}, v{self.vXR+i}")
        e(f"v_add_u32 v{self.vXR}, s{sT3}, v{T}")
        e(f"v_and_b32 v{T}, 1, v{L}\nv_lshlrev_b32 v{T}, 4, v{T}\nv_mov_b32 v{T+1}, 0x3f80\nv_lshlrev_b32 v{T}, v{T}, v{T+1}")
        e(f"v_and_b32 v{T+1}, 2, v{L}\nv_cmp_eq_u32 vcc, 0, v{T+1}")
        e(f"v_mov_b32 v{self.vONES}, 0x3f803f80\nv_mov_b32 v{self.vONES+1}, 0x3f803f80")
        e(f"v_cndmask_b32 v{self.vID}, 0, v{T}, vcc\nv_xor_b32 v{self.vID+1}, v{self.vID}, v{T}")
        e(f"v_bfe_u32 v{T}, v{L}, 2, 2")
        e(f"v_lshrrev_b32 v{T+1}, 5, v{L}\nv_lshlrev_b32 v{T+1}, 12, v{T+1}")
        e(f"v_lshl_add_u32 v{T+1}, v{T}, 7, v{T+1}")
        e(f"v_bfe_u32 v{T+2}, v{L}, 3, 1\nv_lshl_add_u32 v{T+1}, v{T+2}, 6, v{T+1}")
        e(f"v_bfe_u32 v{T+2}, v{L}, 4, 1\nv_lshl_add_u32 v{T+1}, v{T+2}, 5, v{T+1}")
        e(f"v_and_b32 v{T+2}, 3, v{L}\nv_lshl_add_u32 v{self.vTR}, v{T+2}, 3, v{T+1}")
        e(f"v_xor_b32 v{self.vTR+1}, 64, v{self.vTR}")
        e(f"v_add_u32 v{self.vTR+2}, 0x10000, v{self.vTR}\nv_add_u32 v{self.vTR+3}, 0x10000, v{self.vTR+1}")
        e(f"v_and_b32 v{T}, 15, v{L}\nv_lshlrev_b32 v{T}, 4, v{T}")
        e(f"v_lshrrev_b32 v{T+1}, 5, v{L}\nv_lshl_add_u32 v{T}, v{T+1}, 8, v{T}")
        e(f"v_bfe_u32 v{T+1}, v{L}, 4, 1\nv_lshl_add_u32 v{T}, v{T+1}, 10, v{T}")
        e(f"s_and_b32 s{sT0}, s{sW}, 1\ns_lshl_b32 s{sT0}, s{sT0}, 11\nv_add_u32 v{self.vHS}, s{sT0}, v{T}")
        e(f"s_lshr_b32 s{sT0}, s{sW}, 1\ns_lshl_b32 s{sT1}, s{sRB}, 1\ns_add_u32 s{sT0}, s{sT0}, s{sT1}\ns_mul_i32 s{sHB}, s{sT0}, {74*4096}")
        e(f"s_lshl_b32 s{sW4K}, s{sW}, 12\ns_mov_b32 s{sLN2}, {f32(LN2)}\ns_mov_b32 s{sEPS}, {f32(1e-6/LN2)}")
        e(f"v_cmp_eq_u32 vcc, 0, v0\nv_mov_b32 v{T}, {OOB}\ns_nop 0\nv_cndmask_b32 v{self.vSIG}, v{T}, 0, vcc")
        e(f"s_cmp_lt_u32 s{sW}, 2\ns_cselect_b32 s{sGU0}, s{P_G}, s{P_U}\ns_cselect_b32 s{sGU1}, s{P_G+1}, s{P_U+1}")
        e(f"v_lshrrev_b32 v{T}, 3, v{L}\ns_and_b32 s{sT0}, s{sW}, 1\ns_lshl_b32 s{sT0}, s{sT0}, 3\nv_add_u32 v{T}, s{sT0}, v{T}")
        e(f"v_bfe_u32 v{T+1}, v{L}, 4, 1\nv_lshlrev_b32 v{T+1}, 2, v{T+1}\nv_and_b32 v{T+2}, 7, v{L}\nv_xor_b32 v{T+1}, v{T+1}, v{T+2}")
        e(f"v_lshlrev_b32 v{T+1}, 4, v{T+1}")
        e(f"v_mul_u32_u24 v{T+2}, 3456, v{T}\nv_add_u32 v{self.vWV2}, v{T+2}, v{T+1}")
        for j in range(1, 4):
            e(f"v_add_u32 v{self.vWV2+j}, {j*(16*3456-1024)}, v{self.vWV2}")
        if not B:
            e(f"s_cmp_lt_u32 s{sID}, 5\ns_cselect_b32 s{sT0}, 3840, s{sT0}\ns_cbranch_scc1 L_g1q")
            e(f"s_add_u32 s{sT1}, s{sID}, 11\ns_lshl_b32 s{sT1}, s{sT1}, 7")
            e(f"s_add_u32 s{S_W}, s{sGU0}, s{sT1}\ns_addc_u32 s{S_W+1}, s{sGU1}, 0\ns_sub_u32 s{S_W+2}, {640*3456}, s{sT1}")
            e(f"s_mov_b32 s{sT0}, 3456\ns_branch L_g1d")
            e.label("L_g1q")
            e(f"s_lshl_b32 s{sT1}, s{sID}, 1\ns_lshr_b32 s{sT2}, s{sW}, 1\ns_add_u32 s{sT1}, s{sT1}, s{sT2}\ns_lshl_b32 s{sT1}, s{sT1}, 7")
            e(f"s_add_u32 s{S_W}, s{P_QKV}, s{sT1}\ns_addc_u32 s{S_W+1}, s{P_QKV+1}, 0\ns_sub_u32 s{S_W+2}, {640*3840}, s{sT1}")
            e.label("L_g1d")
            e(f"s_mov_b32 s{S_W+3}, 0x20000")
            e(f"v_mul_u32_u24 v{T+2}, s{sT0}, v{T}\nv_add_u32 v{self.vWV1}, v{T+2}, v{T+1}")
            e(f"s_lshl_b32 s{sT1}, s{sT0}, 4\ns_sub_u32 s{sT1}, s{sT1}, 1024")
            for j in range(1, 4):
                e(f"v_add_u32 v{self.vWV1+j}, s{sT1}, v{self.vWV1+j-1}")
            e(f"s_lshl_b32 s{sT0}, s{sT0}, 6")
            for i in range(10):
                e(f"s_mul_i32 s{SEG1+i}, s{SEG2+i}, s{sT0}")
        else:
            e(f"s_mul_i32 s{sT1}, s{sID}, 160")
            e(f"s_add_u32 s{S_W}, s{P_QKV}, s{sT1}\ns_addc_u32 s{S_W+1}, s{P_QKV+1}, 0\ns_sub_u32 s{S_W+2}, {640*3840}, s{sT1}")
            e(f"s_mov_b32 s{S_W+3}, 0x20000")
            e(f"s_mul_i32 s{sT0}, s{sW}, {16*3840}")
            for i in range(5):
                e(f"v_add_u32 v{T}, {64*i}, v{L}\nv_mul_u32_u24 v{T+1}, 3277, v{T}\nv_lshrrev_b32 v{T+1}, 16, v{T+1}")
                e(f"v_mul_u32_u24 v{T+2}, 20, v{T+1}\nv_sub_u32 v{T+2}, v{T}, v{T+2}")
                e(f"v_mov_b32 v{T+3}, {1280}\nv_mov_b32 v{T+4}, {2560-32}\nv_cmp_lt_u32 vcc, 9, v{T+2}\nv_mov_b32 v{T+6}, {2560-192}\ns_nop 0")
                e(f"v_cndmask_b32 v{T+3}, v{T+3}, v{T+4}, vcc\nv_cmp_lt_u32 vcc, 11, v{T+2}")
                e(f"v_mul_u32_u24 v{T+1}, 3840, v{T+1}\nv_lshl_add_u32 v{T+1}, v{T+2}, 4, v{T+1}")
                e(f"v_cndmask_b32 v{T+3}, v{T+3}, v{T+6}, vcc")
                e(f"v_add3_u32 v{self.vWV1+i}, v{T+1}, v{T+3}, s{sT0}")
                if 0 < i < 4:
                    e(f"v_subrev_u32 v{self.vWV1+i}, {1024*i}, v{self.vWV1+i}")
            for i in range(10):
                e(f"s_mul_i32 s{SEG1+i}, s{SEG2+i}, {64*3840}")
            e(f"v_bfe_u32 v{T}, v{L}, 2, 2\nv_lshrrev_b32 v{T+1}, 5, v{L}\nv_lshl_add_u32 v{T}, v{T+1}, 3, v{T}\nv_mul_u32_u24 v{T}, 320, v{T}")
            e(f"v_bfe_u32 v{T+1}, v{L}, 4, 1\nv_lshl_add_u32 v{T}, v{T+1}, 5, v{T}")
            e(f"v_and_b32 v{T+1}, 3, v{L}\nv_lshl_add_u32 v{self.vKTR}, v{T+1}, 3, v{T}")
            e(f"v_add_u32 v{self.vKTR+1}, {60*1024}, v{self.vKTR}\nv_add_u32 v{self.vKTR+2}, {120*1024}, v{self.vKTR}")
        for i in range(10):
            e(f"s_mul_i32 s{SEG2+i}, s{SEG2+i}, {64*3456}")
        if not B:
            self.pack_setup(e)
        st()
        for i in range(2, 5):
            xdma(i)
        SA = self.vCT

        def stats(i):
            for j in range(8):
                first = i == 0 and j < 2
                src = a(16 * i + 2 * j, 2)
                d0, d1 = v(SA + 8 * (j & 1), 4), v(SA + 8 * (j & 1) + 4, 4)
                e(f"v_mfma_f32_4x4x4_16b_bf16 {d0}, {v(self.vONES,2)}, {src}, {'0' if first else d0}")
                e(f"v_mfma_f32_4x4x4_16b_bf16 {d1}, {src}, {src}, {'0' if first else d1}")

        for i in range(10):
            e.wait(vm=("x", i))
            if i == 0:
                st()
            for j in range(4):
                e.lg(f"ds_read_b128 {a(16*i+4*j,4)}, v{self.vXR+j} offset:{(i%5)*4096}", ("xr", i))
            if B and i == 2:
                assert not e.pending_vm("init")
                e.vm(f"buffer_store_dword v{self.vONE}, v{self.vSIG}, s[{S_DBG}:{S_DBG+3}], s{sT5} offen sc1", "initf")
            if i > 0:
                stats(i - 1)
            e.wait(lg=("xr", i))
            if i < 5:
                xdma(i + 5)
                if i == 4 and not B:
                    srd(e, S_P, P_D, 1728 * 1280)
                    e(f"s_mov_b32 s{S_X}, s{P_BX}\ns_mov_b32 s{S_X+1}, s{P_BX+1}\ns_mov_b32 s{S_X+2}, s{P_OUT}")
            else:
                self.prologue_w(e, i - 5)
        st()
        stats(9)
        e.nop(3)
        S0, Q0, S1, Q1 = SA, SA + 4, SA + 8, SA + 12
        e(f"v_and_b32 v{T}, 1, v{L}\nv_cmp_eq_u32 vcc, 1, v{T}\nv_and_b32 v{T+1}, 2, v{L}")
        e(f"v_add_f32 v{S0}, v{S0}, v{S1}")
        for i in range(4):
            e(f"v_add_f32 v{Q0+i}, v{Q0+i}, v{Q1+i}")
        e(f"v_cndmask_b32 v{Q0}, v{Q0}, v{Q0+1}, vcc\nv_cndmask_b32 v{Q0+2}, v{Q0+2}, v{Q0+3}, vcc")
        e(f"v_cmp_ne_u32 vcc, 0, v{T+1}\nv_mov_b32 v{S1}, v{S0}\ns_nop 0")
        e(f"v_cndmask_b32 v{Q0}, v{Q0}, v{Q0+2}, vcc")
        e(f"v_permlane32_swap_b32 v{S0}, v{S1}")
        e(f"v_mov_b32 v{Q1}, v{Q0}")
        e(f"v_add_f32 v{S0}, v{S0}, v{S1}")
        e(f"v_mul_f32 v{S0}, {f32(1/640)}, v{S0}")
        e(f"v_permlane32_swap_b32 v{Q0}, v{Q1}")
        e(f"v_cvt_pk_bf16_f32 v{S1}, v{S0}, v{S0}")
        e(f"v_add_f32 v{Q0}, v{Q0}, v{Q1}")
        e(f"v_and_b32 v{S1}, 0xffff0000, v{S1}")
        for i in range(4):
            e(f"v_xor_b32 v{self.vNM+i}, 0x80000000, v{S1}")
        e(f"v_mul_f32 v{T}, v{S0}, v{S0}")
        e(f"v_mul_f32 v{T+1}, {f32(1/640)}, v{Q0}")
        self.center_mfma(e, 0)
        e(f"v_sub_f32 v{T}, v{T+1}, v{T}\nv_max_f32 v{T}, 0, v{T}")
        e(f"v_cvt_pk_bf16_f32 v{T}, v{T}, v{T}\nv_and_b32 v{T}, 0xffff0000, v{T}")
        e(f"v_add_f32 v{T}, {f32(1e-5)}, v{T}")
        e(f"v_cvt_pk_bf16_f32 v{T}, v{T}, v{T}\nv_and_b32 v{T}, 0xffff0000, v{T}")
        e(f"v_sqrt_f32 v{T}, v{T}")
        cv = self.center_valu(0)
        e(cv[0][0])
        e(f"v_cvt_pk_bf16_f32 v{T}, v{T}, v{T}\nv_and_b32 v{T}, 0xffff0000, v{T}")
        e(f"v_rcp_f32 v{T+1}, v{T}")
        e(f"v_mul_f32 v{self.vC}, v{T}, v{T}")
        e(f"v_mul_f32 v{self.vK2}, {f32(LOG2E)}, v{T+1}\nv_mul_f32 v{self.vK1}, {f32(-LOG2E)}, v{T+1}")
        if B:
            e(f"v_and_b32 v{T+2}, 31, v{L}\nv_lshlrev_b32 v{T+2}, 2, v{T+2}\nv_add_u32 v{T+2}, s{sT3}, v{T+2}")
            e(f"v_lshrrev_b32 v{T+3}, 5, v{L}\nv_lshlrev_b32 v{T+3}, 4, v{T+3}\nv_add_u32 v{T+3}, s{sT3}, v{T+3}")
            e.lg(f"ds_write_b32 v{T+2}, v{T+1}", "rv")
            e.lg(f"ds_write_b32 v{T+2}, v{self.vK2} offset:128", "rv")
            for j in range(4):
                e.lg(f"ds_read_b128 {v(self.RV+4*j,4)}, v{T+3} offset:{32*j}", "rv")
                e.lg(f"ds_read_b128 {v(self.RK+4*j,4)}, v{T+3} offset:{128+32*j}", "rv")
        return cv[1:]

    def center_mfma(self, e, S):
        for j in range(8):
            e(f"v_mfma_f32_4x4x4_16b_bf16 {v(self.vCT+4*j,4)}, {v(self.vID,2)}, {a(16*S+2*j,2)}, {v(self.vNM,4)}")

    def center_valu(self, S):
        q = []
        pend = []
        for j in range(16):
            u = 4 * S + j // 4
            src = self.vCT + 2 * j
            if S in self.ARCH:
                q.append((f"v_cvt_pk_bf16_f32 v{self.AARCH+16*self.ARCH.index(S)+j}, v{src}, v{src+1}", 1))
            else:
                q.append((f"v_cvt_pk_bf16_f32 v{src}, v{src}, v{src+1}", 1))
                pend.append((f"v_accvgpr_write_b32 a{16*S+j}, v{src}", 1))
                if len(pend) > 1:
                    q.append(pend.pop(0))
        return q + pend

    def pack_setup(self, e):
        L, T = self.vLANE, self.vT
        e(f"s_lshl_b32 s{sT0}, s{sID}, 4\ns_add_u32 s{sT0}, s{sT0}, s{sRB}\ns_lshl_b32 s{sT1}, s{sW}, 7\ns_add_u32 s{sT0}, s{sT0}, s{sT1}")
        for j in range(2):
            so = (sPK0, sPK1)[j]
            if j:
                e(f"s_add_u32 s{sT0}, s{sT0}, 512")
            e(f"s_mul_i32 s{sT1}, s{sT0}, 6554\ns_lshr_b32 s{sT1}, s{sT1}, 16")
            e(f"s_mul_i32 s{sT2}, s{sT1}, 10\ns_sub_u32 s{sT2}, s{sT0}, s{sT2}")
            e(f"s_mul_i32 s{so}, s{sT1}, {32*1280}\ns_lshl_b32 s{sT4}, s{sT2}, 7\ns_add_u32 s{so}, s{so}, s{sT4}")
            if j:
                e(f"s_cmp_lt_u32 s{sT1}, 54")
                e(f"s_cselect_b32 s{P_BX}, s{P_D}, s{P_WO}\ns_cselect_b32 s{P_BX+1}, s{P_D+1}, s{P_WO+1}")
                e(f"s_cselect_b32 s{sT4}, 0, {54*32*1280}\ns_mov_b32 s{P_OUT}, {640*1280}\ns_cselect_b32 s{P_OUT}, {1728*1280}, s{P_OUT}")
                e(f"s_sub_u32 s{so}, s{so}, s{sT4}")
            for t in range(4):
                d = PKST + 4 * j + t
                e(f"s_lshl_b32 s{sT4}, s{sT2}, 2\ns_add_u32 s{sT4}, s{sT4}, {t}")
                e(f"s_mul_i32 s{sT5}, s{sT4}, 52\ns_lshr_b32 s{sT5}, s{sT5}, 8")
                e(f"s_mul_i32 s{d}, s{sT5}, {74*5-5}\ns_add_u32 s{d}, s{d}, s{sT4}")
                e(f"s_mul_i32 s{sT5}, s{sT1}, 5\ns_add_u32 s{d}, s{d}, s{sT5}\ns_lshl_b32 s{d}, s{d}, 10\ns_add_u32 s{d}, s{d}, {WS_B2}")
                if j:
                    e(f"s_cmp_lt_u32 s{sT0}, 740\ns_cselect_b32 s{d}, s{d}, {OOB}")
        e(f"v_bfe_u32 v{T}, v{L}, 2, 2\nv_bfe_u32 v{T+1}, v{L}, 4, 1\nv_lshl_add_u32 v{T}, v{T+1}, 2, v{T}")
        e(f"v_lshrrev_b32 v{T+1}, 1, v{T}\nv_bfe_u32 v{T+2}, v{L}, 1, 1\nv_xor_b32 v{T+1}, v{T+1}, v{T+2}")
        e(f"v_lshrrev_b32 v{T+2}, 5, v{L}\nv_lshl_add_u32 v{T}, v{T+2}, 4, v{T}")
        e(f"v_lshlrev_b32 v{T}, 7, v{T}\nv_lshl_add_u32 v{T}, v{T+1}, 4, v{T}")
        e(f"v_and_b32 v{T+1}, 1, v{L}\nv_lshl_add_u32 v{T}, v{T+1}, 3, v{T}")
        for i in range(1, 4):
            e(f"v_xor_b32 v{self.vPA+i}, {32*i}, v{T}\nv_add_u32 v{self.vPA+i}, s{sT3}, v{self.vPA+i}")
        e(f"v_add_u32 v{self.vPA}, s{sT3}, v{T}")

    def pack_events(self, ev):
        PD = 208

        def add(u, t, fn, cost=1):
            ev.setdefault((u, t), []).append((fn, cost))

        u0 = 16
        for j in range(2):
            sr, so = ((S_P, sPK0), (S_X, sPK1))[j]
            for hh in range(2):
                u = u0 + 2 * j + hh

                def m0f(e, j=j):
                    self.set_m0(e, ("pk", j), f"s_add_u32 m0, s{sT3}, {j*4096}")

                add(u, 1, m0f)
                for i in range(2 * hh, 2 * hh + 2):
                    add(u, 2, lambda e, i=i, sr=sr, so=so, j=j: e.vm(
                        f"buffer_load_dwordx4 v{self.vXV+i}, s[{sr}:{sr+3}], s{so} offen offset:{i*1024} lds", ("pk", j)))
        u1 = 30
        add(u1 - 1, 2, lambda e: e.wait(vm=("pk", 1)))
        for j in range(2):
            for t in range(4):
                u = u1 + 4 * j + t
                for rd in range(2):
                    add(u, 2, lambda e, j=j, t=t, rd=rd: e.lg(
                        f"ds_read_b64_tr_b16 {a(PD+16*j+4*t+2*rd,2)}, v{self.vPA+(t^(2*rd))} offset:{j*4096+rd*1024}", ("pkr", j, t)))

                def stf(e, j=j, t=t):
                    e.wait(lg=("pkr", j, t))
                    e.vm(f"buffer_store_dwordx4 {a(PD+16*j+4*t,4)}, v{self.vL16}, s[{S_WS}:{S_WS+3}], s{PKST+4*j+t} offen sc1", "pks")

                add(u + 2, 0, stf)

    def q_slot(self, V):
        return ((V >> 2) + self.slot0) % 5

    def q_dma_pre(self, e, V):
        n = 0
        gi = V // 40
        if V % 40 == 0 and (gi > 0 or self.typ == "B"):
            add = (8 if self.typ == "B" else 0 if gi == 1 else 19)
            e(f"s_add_u32 s{sT0}, s{sID}, {add}\ns_lshl_b32 s{sT0}, s{sT0}, 7")
            e(f"s_add_u32 s{S_W}, s{sGU0}, s{sT0}\ns_addc_u32 s{S_W+1}, s{sGU1}, 0\ns_sub_u32 s{S_W+2}, {640*3456}, s{sT0}")
            n += 5
        n += self.set_m0(e, ("q", V >> 2), f"s_add_u32 m0, s{sW4K}, {self.q_slot(V)*16384}")
        return n

    def q_dma(self, e, V):
        assert self.m0key == ("q", V >> 2)
        first = V < 40 and self.typ != "B"
        wv = (self.vWV1 if first else self.vWV2) + (V & 3)
        seg = (SEG1 if first else SEG2) + (V % 40) // 4
        e.vm(f"buffer_load_dwordx4 v{wv}, s[{S_W}:{S_W+3}], s{seg} offen offset:{(V&3)*1024} lds", ("w", V >> 2))

    def q_read(self, e, U, t, rd):
        mat, th = t & 1, t >> 1
        off = self.q_slot(U) * 16384 + mat * 8192 + (U & 3) * 1024 + rd * 512
        win = off >> 16
        e.lg(f"ds_read_b64_tr_b16 {a(self.FR+16*(U%3)+4*t+2*rd,2)}, v{self.vTR+2*win+th} offset:{off & 0xffff}", ("r", U))

    def kv_base(self, S):
        return (S % 8) * 20480

    def kv_dma(self, e, S, i):
        e.vm(f"buffer_load_dwordx4 v{self.vWV1+i}, s[{S_W}:{S_W+3}], s{SEG1+S} offen offset:{(i&3)*1024} lds", ("kw", S))

    def kv_m0(self, e, S, i):
        return self.set_m0(e, ("kv", S, i >> 2), f"s_add_u32 m0, s{sT4}, {self.kv_base(S) + (i>>2)*4096}")

    def kv_read(self, e, u, t, rd):
        off = self.kv_base(u >> 2) + (u & 3) * 5120 + rd * 1280 + t * 64
        win = off // (60 * 1024)
        e.lg(f"ds_read_b64_tr_b16 {a(self.FR+20*(u%3)+4*t+2*rd,2)}, v{self.vKTR+win} offset:{off - win*60*1024}", ("r", u))

    def prologue_w(self, e, n):
        if self.typ == "B":
            if n == 0:
                e(f"s_mul_i32 s{sT4}, s{sW}, 5120")
            if n < 4:
                for i in range(5):
                    if self.kv_m0(e, n, i):
                        e("s_nop 0")
                    self.kv_dma(e, n, i)
        else:
            for V in range(4 * n, min(4 * n + 4, 17)):
                if self.q_dma_pre(e, V):
                    e("s_nop 0")
                self.q_dma(e, V)

    def fill(self, e, q, budget, memslot):
        while q and budget > 0:
            it = q[0]
            ismem = len(it) > 2
            if ismem and not memslot:
                break
            if it[1] > budget:
                break
            q.pop(0)
            if callable(it[0]):
                it[0](e)
            else:
                e(it[0])
            budget -= it[1]
            if not ismem:
                memslot = False
        return budget

    def quad(self, e, gi, q, ev, NV, center=False, look=17, qstart=1):
        acc = self.ACC[gi % len(self.ACC)]
        for u in range(40):
            U = 40 * gi + u
            V = U + look
            for t in range(4):
                C = v(acc + 16 * t, 16)
                e(f"v_mfma_f32_32x32x16_bf16 {C}, {a(self.FR+16*(U%3)+4*t,4)}, {self.A(u)}, {'0' if u == 0 else C}")
                b = 5
                if U + 2 < NV:
                    self.q_read(e, U + 2, t, 0)
                    self.q_read(e, U + 2, t, 1)
                    b -= 2
                if t == 1 and self.dma_next <= V and self.dma_next < NV:
                    self.q_dma(e, self.dma_next)
                    self.dma_next += 1
                    b -= 1
                for fn, cost in ev.get((u, t), []):
                    fn(e)
                    b -= cost
                last = t == 3
                bar = last and (U & 3) == 1 and U + 3 < NV
                if last:
                    b -= 2 if bar else 1
                pre = t == 0 and self.dma_next <= V and self.dma_next < NV
                if pre and (self.m0key != ("q", self.dma_next >> 2)):
                    b -= 1
                if u * 4 + t >= qstart:
                    self.fill(e, q, b, True)
                if pre:
                    self.q_dma_pre(e, self.dma_next)
                if center and t == 0 and (u & 3) == 0 and u < 36:
                    assert not q, ("centering queue not drained", u, len(q))
                    self.center_mfma(e, u // 4 + 1)
                    self.pend_center = self.center_valu(u // 4 + 1)
                if center and t == 1 and (u & 3) == 0 and u < 36:
                    q += self.pend_center
                if last:
                    e.wait(vm=("w", (U + 3) >> 2) if bar else None, lg=("r", U + 1))
                    if bar:
                        e("s_barrier")
                        for fn in ev.get(("bar", u), []):
                            fn(e)

    def quad_start(self, e, U0):
        e.wait(vm=("w", U0 >> 2), lg="all")
        e("s_barrier")
        for U in (U0, U0 + 1):
            for t in range(4):
                self.q_read(e, U, t, 0)
                self.q_read(e, U, t, 1)

    def epi_gu(self, acc, Qadd, pk=False):
        q = []
        q.append((f"s_add_u32 s{sT1}, s{sID}, {Qadd}", 1))
        q.append((f"s_lshl_b32 s{sT1}, s{sT1}, 13", 1))
        q.append((f"s_add_u32 s{sT1}, s{sT1}, s{sHB}", 1))
        q.append((f"s_add_u32 s{sT2}, s{sT1}, 4096", 1))
        for th in range(2):
            G, U_ = acc + 32 * th, acc + 32 * th + 16
            stages = []
            for r in range(16):
                g, u_ = G + r, U_ + r
                stages.append([
                    (f"v_mul_f32 v{u_}, v{g}, v{u_}", 1),
                    (f"v_mul_f32 v{g}, v{self.vK1}, v{g}", 1),
                    (f"v_exp_f32 v{g}, v{g}", 2),
                    (f"v_fma_f32 v{g}, v{g}, v{self.vC}, v{self.vC}", 1),
                    (f"v_rcp_f32 v{g}, v{g}", 2),
                    (f"v_mul_f32 v{u_}, v{u_}, v{g}", 1),
                ])
            for i in range(16 + 4):
                for k, off in ((0, 0), (4, 2), (1, 0), (3, 1), (2, 0), (5, 3)):
                    r = i - off
                    if 0 <= r < 16:
                        q.append(stages[r][k])
                r = i - 4
                if r >= 0 and r & 1:
                    c = r >> 3
                    q.append((f"v_cvt_pk_bf16_f32 v{G+8*c+((r&7)>>1)}, v{U_+r-1}, v{U_+r}", 1))
                    if (r & 7) == 7:
                        q.append((lambda e, G=G, c=c, th=th: e.vm(
                            f"buffer_store_dwordx4 {v(G+8*c,4)}, v{self.vHS}, s[{S_WS}:{S_WS+3}], s{(sT1,sT2)[th]} offen offset:{c*512} sc1", "h"), 1, "mem"))
        return q

    def phi_items(self, src, kreg, dst, ntmp=4):
        T = self.vT
        q = []
        for i in range(16 + 3):
            r = i
            if r < 16:
                q.append((f"v_mul_f32 v{src+r}, v{kreg(r)}, v{src+r}", 1))
            r = i - 2
            if 0 <= r < 16:
                q.append((f"v_fmac_f32 v{T+r%ntmp}, s{sLN2}, v{src+r}", 1))
            r = i - 3
            if 0 <= r < 16 and r & 1:
                q.append((f"v_cvt_pk_bf16_f32 v{dst+(r>>1)}, v{T+(r-1)%ntmp}, v{T+r%ntmp}", 1))
                if (r & 7) == 7:
                    q.append((None, r >> 3))
            r = i
            if r < 16:
                q.append((f"v_exp_f32_e64 v{T+r%ntmp}, v{src+r} clamp", 2))
            r = i - 1
            if 0 <= r < 16:
                q.append((f"v_max_f32 v{src+r}, s{sEPS}, v{src+r}", 1))
        return q

    def epi_q(self, acc):
        q = []
        q.append((f"s_lshl_b32 s{sT1}, s{sRB}, 2", 1))
        q.append((f"s_add_u32 s{sT1}, s{sT1}, s{sW}", 1))
        q.append((f"s_mul_i32 s{sT1}, s{sT1}, 5", 1))
        q.append((f"s_add_u32 s{sT1}, s{sT1}, s{sID}", 1))
        q.append((f"s_lshl_b32 s{sT1}, s{sT1}, 13", 1))
        q.append((f"s_add_u32 s{sT1}, s{sT1}, {WS_PQ}", 1))
        q.append((f"s_add_u32 s{sT2}, s{sT1}, 4096", 1))
        for t in range(4):
            mat, th = t & 1, t >> 1
            src = acc + 16 * t
            for it in self.phi_items(src, lambda r: self.vK2, src, 6):
                if it[0] is None:
                    c = it[1]
                    q.append((lambda e, src=src, c=c, mat=mat, th=th: e.vm(
                        f"buffer_store_dwordx4 {v(src+4*c,4)}, v{self.vL16}, s[{S_WS}:{S_WS+3}], s{(sT1,sT2)[mat]} offen offset:{(2*th+c)*1024} sc1", "h"), 1, "mem"))
                else:
                    q.append(it)
        return q

    def drain(self, e, q):
        for it in q:
            if callable(it[0]):
                it[0](e)
            else:
                e(it[0])
        q.clear()

    def init_poll_text(self):
        return f"buffer_load_dword v{self.vPOLL}, v{self.vPOLL2}, s[{S_DBG}:{S_DBG+3}], 0 offen sc1"

    def signal(self, e, soff):
        e.vm(f"buffer_atomic_add v{self.vONE}, v{self.vSIG}, s[{S_WS}:{S_WS+3}], s{soff} offen", "sig")

    def path_A(self):
        e = Emit()
        self.stamp = st = Stamper(e, self.vST)
        self.slot0 = 0
        e.label("L_A")
        st()
        q = self.prologue(e)
        self.quad_start(e, 0)
        self.drain(e, q)
        e.wait(lg=("r", 0))
        st()
        self.dma_next = 17
        ev = {}
        self.pack_events(ev)
        self.quad(e, 0, q, ev, 120, center=True)
        assert not q
        st()
        e(f"s_cmp_lt_u32 s{sID}, 5\ns_cbranch_scc1 L_Aq")
        save = (self.dma_next, self.m0key)
        eq = e.fork()
        q = self.epi_gu(self.ACC[0], 11)
        self.quad(e, 1, q, {}, 120)
        assert not q, len(q)
        e.label("L_A3")
        self.dma_next, self.m0key = save
        eq.label("L_Aq")
        q = self.epi_q(self.ACC[0])
        ev = {(1, 2): [(lambda e: e(f"v_lshlrev_b32 v{self.vPOLL2}, 2, v{self.vLANE}"), 1)],
              (2, 2): [(lambda e: e.vm(self.init_poll_text(), "poll"), 1)]}
        self.quad(eq, 1, q, ev, 120)
        nleft = len(q)
        self.drain(eq, q)
        print("q-epilogue overflow items:", nleft, file=sys.stderr)
        assert not eq.pending_vm("poll")
        poll_check(eq, self.vPOLL, 1, self.init_poll_text())
        eq("s_branch L_A3")
        def norm(vq):
            return [t for t, m in vq if isinstance(t, tuple)]
        assert norm(e.vmq) == norm(eq.vmq), (e.vmq, eq.vmq)
        assert e.lgq == eq.lgq
        e.vmq = [(t, False) for t in norm(e.vmq)] + [("hq", True)]
        st()
        q = self.epi_gu(self.ACC[1], 0)

        def sig_pq(e):
            assert not e.pending_vm("hq")
            self.signal(e, sT3)

        ev = {(2, 2): [(lambda e: e(f"s_lshl_b32 s{sT3}, s{sRB}, 7\ns_add_u32 s{sT3}, s{sT3}, {CNT_PQ}"), 2)],
              (3, 2): [(lambda e: e(f"s_cmp_lt_u32 s{sID}, 5\ns_cselect_b32 s{sT3}, s{sT3}, {OOB}"), 2)],
              (5, 2): [(lambda e: e.wait(vm="hq"), 1)],
              (6, 0): [(sig_pq, 1)]}
        self.quad(e, 2, q, ev, 120)
        assert not q, len(q)
        st()
        q = self.epi_gu(self.ACC[0], 19)
        e.nop(6)
        self.drain(e, q)
        st()
        if CFG["stamps"]:
            e("s_waitcnt vmcnt(0)")
        st.finish(e, 0, self.vT)
        e("s_endpgm")
        lines = e.lines + eq.lines + e.slow + eq.slow + ["L_endA:"]
        i1, i2 = e.lines.index("s_cbranch_scc1 L_Aq"), e.lines.index("L_A3:")
        errs = check_hazards(e.lines, "A") + check_hazards(e.lines[i1-60:i1+1] + eq.lines + e.lines[i2:i2+60], "Aq")
        return lines, errs

    def path_B(self):
        e = Emit()
        self.stamp = st = Stamper(e, self.vST)
        self.slot0 = 3
        T = self.vT
        L = self.vLANE
        e.label("L_B")
        st()
        q = self.prologue(e)
        e.wait(vm=("kw", 0), lg="all")
        e("s_barrier")
        for u in (0, 1):
            for t in range(5):
                self.kv_read(e, u, t, 0)
                self.kv_read(e, u, t, 1)
            if u == 0:
                self.drain(e, q)
        e.wait(lg=("r", 0))
        st()
        plan = []
        for S in range(4, 10):
            for i in range(5):
                plan.append(("kv", S, i, 0 if S < 8 else 4 * (S - 6) - 2))
        for V in range(8):
            plan.append(("q", V, 0, 18))
        acc = self.KVACC
        for u in range(40):
            for t in range(5):
                C = v(acc + 16 * t, 16)
                e(f"v_mfma_f32_32x32x16_bf16 {C}, {self.A(u)}, {a(self.FR+20*(u%3)+4*t,4)}, {'0' if u == 0 else C}")
                b = 5
                if u + 2 < 40:
                    self.kv_read(e, u + 2, t, 0)
                    self.kv_read(e, u + 2, t, 1)
                    b -= 2
                dslot = t == 1 or (t == 3 and (u & 1) == 0)
                pslot = t == 0 or (t == 2 and (u & 1) == 0)
                if dslot and plan and plan[0][3] <= u:
                    p = plan.pop(0)
                    if p[0] == "kv":
                        assert self.m0key == ("kv", p[1], p[2] >> 2)
                        self.kv_dma(e, p[1], p[2])
                    else:
                        self.q_dma(e, p[1])
                    b -= 1
                if u == 30 and t == 2:
                    e(f"v_lshlrev_b32 v{self.vPOLL2}, 2, v{L}")
                    b -= 1
                if u == 31 and t == 2:
                    e.vm(self.init_poll_text(), "poll")
                    b -= 1
                last = t == 4
                bar = last and (u & 3) == 1 and u + 3 < 40
                if last:
                    b -= 2 if bar else 1
                if pslot:
                    b -= 1
                self.fill(e, q, b, True)
                if pslot and plan and plan[0][3] <= u:
                    p = plan[0]
                    if p[0] == "kv":
                        self.kv_m0(e, p[1], p[2])
                    else:
                        self.q_dma_pre(e, p[1])
                if t == 0 and (u & 3) == 0 and u < 36:
                    assert not q
                    self.center_mfma(e, u // 4 + 1)
                if t == 1 and (u & 3) == 0 and u < 36:
                    q += self.center_valu(u // 4 + 1)
                if last:
                    e.wait(vm=("kw", (u + 3) >> 2) if bar else None, lg=("r", u + 1))
                    if bar:
                        e("s_barrier")
        assert not plan and not q
        st()
        e(f"s_getpc_b64 s[{sT0}:{sT1}]")
        e.label("L_tabpc")
        e(f"s_mul_i32 s{sT2}, s{sW}, 96\ns_add_u32 s{sT2}, s{sT2}, kvtab-L_tabpc")
        e(f"s_add_u32 s{sT0}, s{sT0}, s{sT2}\ns_addc_u32 s{sT1}, s{sT1}, 0")
        MSK, TAB = 44, 72
        e(f"s_load_dwordx16 s[{MSK}:{MSK+15}], s[{sT0}:{sT1}], 0\ns_load_dwordx8 s[{TAB}:{TAB+7}], s[{sT0}:{sT1}], 64")
        XW = self.vKTR
        e(f"s_lshl_b32 s{sT2}, s{sW}, 11\ns_add_u32 s{sT2}, s{sT2}, {AUX}\nv_add_u32 v{XW}, s{sT2}, v{self.vL16}")
        e(f"v_and_b32 v{T+7}, 16, v{L}\nv_cmp_eq_u32 vcc, 0, v{T+7}\nv_mov_b32 v{T+7}, 0x3f803f80")
        K0, K1, T2, V0, V1 = [acc + 16 * i for i in range(5)]
        TB = self.ACC[0]

        def xw(tile, reg, c):
            e.lg(f"ds_write_b128 v{XW}, {v(reg,4)} offset:{tile*8192+c*1024}", "xw")

        def phi(src, tile):
            for it in self.phi_items(src, lambda r: self.RK + r, src, 6):
                if it[0] is None:
                    xw(tile, src + 4 * it[1], it[1])
                else:
                    e(it[0])

        def vsc(src, dst, tile, mask):
            for c in range(2):
                for r in range(8 * c, 8 * c + 8, 2):
                    e(f"v_pk_mul_f32 {v(dst+r,2)}, {v(src+r,2)}, {v(self.RV+r,2)}")
                for r in range(8 * c, 8 * c + 8, 2):
                    e(f"v_cvt_pk_bf16_f32 v{dst+8*c+((r&7)>>1)}, v{dst+r}, v{dst+r+1}")
                if mask:
                    for r in range(4):
                        e(f"v_cndmask_b32 v{dst+8*c+r}, v{dst+8*c+r}, v{T+7}, vcc")
                xw(tile, dst + 8 * c, c)

        phi(K0, 0)
        phi(K1, 1)
        vsc(T2, TB, 5, True)
        phi(T2, 2)
        vsc(V0, V0, 3, False)
        vsc(V1, V1, 4, False)
        e("s_waitcnt lgkmcnt(0)")
        e.lgq = []
        e("s_barrier")
        st()
        for i in range(4):
            e(f"v_add_u32 v{T+i}, s{TAB+4+i}, v{self.vL16}")
        XO = [("a", 0), ("a", 16), ("a", 32), ("a", 160), ("a", 176), ("a", 192), ("a", 208), ("a", 224)]
        R1, R2 = v(K0, 16), v(K1, 16)

        def xr(j):
            for i in range(4):
                e.lg(f"ds_read_b128 {R(XO[j],4*i,4)}, v{T+i} offset:{j*1024}", ("xr", j))

        xr(0), xr(1), xr(2)
        V = 8
        for j in range(8):
            e.wait(lg=("xr", j))
            e(f"v_mfma_f32_32x32x16_bf16 {R1}, {R(XO[j],0,4)}, {R(XO[j],4,4)}, {'0' if j == 0 else R1}")
            if j + 3 < 8:
                xr(j + 3)
            self.q_dma_pre(e, V)
            e(f"v_mfma_f32_32x32x16_bf16 {R2}, {R(XO[j],8,4)}, {R(XO[j],12,4)}, {'0' if j == 0 else R2}")
            self.q_dma(e, V)
            V += 1
        self.q_dma_pre(e, V)
        e(f"s_mul_i32 s{sT0}, s{sID}, {24*1024}\ns_add_u32 s{sT0}, s{sT0}, {WS_KV}")
        self.q_dma(e, V)
        self.dma_next = 17
        for i in range(4):
            e(f"s_add_u32 s{TAB+i}, s{TAB+i}, s{sT0}")
        e.wait(vm="poll")
        poll_check(e, self.vPOLL, 1, self.init_poll_text())
        self.quad_start(e, 0)
        for g in range(8):
            e(f"s_mov_b64 exec, s[{MSK+2*g}:{MSK+2*g+1}]")
            for r in range(4):
                e.vm(f"buffer_atomic_add_f32 v{K0+4*g+r}, v{self.vPOLL2}, s[{S_WS}:{S_WS+3}], s{TAB+(g>>1)} offen offset:{((g&1)*4+r)*256}", "at", maybe=True)
        e("s_mov_b64 exec, -1")
        e.wait(lg=("r", 0))
        st()
        cnt_kv, cnt_pq = sT4, sT5
        pkv = f"buffer_load_dword v{self.vPOLL}, off, s[{S_WS}:{S_WS+3}], s{cnt_kv} sc1"
        ppq = f"buffer_load_dword v{T+7}, off, s[{S_WS}:{S_WS+3}], s{cnt_pq} sc1"

        def sig_kv(e):
            assert not e.pending_vm("at")
            self.signal(e, cnt_kv)

        US = CFG.get("us", 13)
        ev = {(2, 2): [(lambda e: e(f"s_lshl_b32 s{cnt_kv}, s{sID}, 7\ns_add_u32 s{cnt_kv}, s{cnt_kv}, {CNT_KV}"), 2)],
              (3, 2): [(lambda e: e(f"s_lshl_b32 s{cnt_pq}, s{sRB}, 7\ns_add_u32 s{cnt_pq}, s{cnt_pq}, {CNT_PQ}"), 2)],
              (US, 2): [(lambda e: e.wait(vm="at"), 1)],
              (US + 1, 0): [(sig_kv, 1)],
              (34, 2): [(lambda e: e.vm(pkv, "p1"), 1), (lambda e: e.vm(ppq, "p2"), 1)]}
        q = []
        self.quad(e, 0, q, ev, 40)
        st()
        q = self.epi_gu(self.ACC[0], 8)
        nq = len(q) // 2
        q1, q2 = q[:nq], q[nq:]
        e.nop(6)
        self.drain(e, q1)
        e.wait(vm="p2")
        poll_check(e, self.vPOLL, 16, pkv)
        poll_check(e, T + 7, 5, ppq)
        st()
        KL = self.KVACC
        PQ = 0
        e(f"s_mul_i32 s{sT0}, s{sID}, {24*1024}\ns_mul_i32 s{sT3}, s{sW}, {6*1024}\ns_add_u32 s{sT0}, s{sT0}, s{sT3}\ns_add_u32 s{sT0}, s{sT0}, {WS_KV}")
        e(f"s_add_u32 s{sT3}, s{sT0}, 4096")
        for i in range(24):
            e.vm(f"buffer_load_dword v{KL+i}, v{self.vPOLL2}, s[{S_WS}:{S_WS+3}], s{sT0 if i < 16 else sT3} offen offset:{(i&15)*256} sc1", "kl")
        e(f"s_lshl_b32 s{sT0}, s{sRB}, 2\ns_add_u32 s{sT0}, s{sT0}, s{sW}\ns_lshl_b32 s{sT0}, s{sT0}, 3\ns_add_u32 s{sT0}, s{sT0}, s{sID}")
        e(f"s_mul_i32 s{sT0}, s{sT0}, 5120\ns_add_u32 s{sT0}, s{sT0}, {WS_PQ}\ns_add_u32 s{sT3}, s{sT0}, 4096")
        for i in range(5):
            e.vm(f"buffer_load_dwordx4 {a(PQ+4*i,4)}, v{self.vL16}, s[{S_WS}:{S_WS+3}], s{sT0 if i < 4 else sT3} offen offset:{(i&3)*1024} sc1", "pq")
        self.drain(e, q2)
        e(f"s_mul_i32 s{sT2}, s{sW}, 3072\ns_add_u32 s{sT2}, s{sT2}, {AUX}\nv_add_u32 v{XW}, s{sT2}, v{self.vL16}")
        e(f"v_add_u32 v{XW+1}, {AUX}, v{self.vL16}")
        e.wait(vm="kl")
        st()
        for f in range(3):
            for i in range(4):
                e(f"v_cvt_pk_bf16_f32 v{KL+8*f+i}, v{KL+8*f+2*i}, v{KL+8*f+2*i+1}")
            e.lg(f"ds_write_b128 v{XW}, {v(KL+8*f,4)} offset:{f*1024}", "kw")
        e.wait(lg="all")
        e("s_barrier")
        KF = 32
        order = [7, 8, 9, 10, 11, 0, 1, 2, 3, 4, 5, 6]
        ft = {0: (0, 0), 1: (0, 1), 2: (0, 2), 3: (1, 1), 4: (1, 2), 5: (1, 3), 6: (1, 4), 7: (2, 0), 8: (2, 1), 9: (2, 2), 10: (2, 3), 11: (2, 4)}
        for f in order:
            e.lg(f"ds_read_b128 {a(KF+4*f,4)}, v{XW+1} offset:{f*1024}", ("kf", f))
        O = [self.KVACC + 32, self.KVACC + 48, self.KVACC + 64]
        e(f"v_cmp_gt_u32 vcc, 32, v{L}")
        for b in range(5):
            e(f"s_mul_i32 s{sT0}, s{sID}, 5\ns_add_u32 s{sT0}, s{sT0}, {108+b}\ns_lshr_b32 s{sT1}, s{sT0}, 1\ns_lshl_b32 s{sT1}, s{sT1}, 12")
            e(f"s_and_b32 s{sT0}, s{sT0}, 1\ns_lshl_b32 s{sT0}, s{sT0}, 9\ns_add_u32 s{sT0}, s{sT0}, s{sT1}\ns_add_u32 s{TAB+b}, s{sT0}, s{sHB}")
        e.wait(vm="pq")
        seen = set()
        for n, f in enumerate(order):
            t, b = ft[f]
            e.wait(lg=("kf", f))
            C = v(O[t], 16)
            e(f"v_mfma_f32_32x32x16_bf16 {C}, {a(KF+4*f,4)}, {a(PQ+4*b,4)}, {C if t in seen else '0'}")
            seen.add(t)
        e.nop(1)
        D = O[2]
        for j in range(4):
            e(f"v_add_f32 v{D+j}, {f32(1e-6)}, v{D+j}")
        for j in range(4):
            e(f"v_rcp_f32 v{D+j}, v{D+j}")
        e(f"v_cndmask_b32 v{D+4}, v{D+1}, v{D}, vcc\ns_nop 0\nv_cndmask_b32 v{D+5}, v{D+3}, v{D+2}, vcc")
        rs = {(0, 0): D, (0, 1): D, (0, 2): D + 4, (0, 3): D + 1, (1, 0): D + 1, (1, 1): D + 2, (1, 2): D + 2, (1, 3): D + 5, (2, 2): D + 3, (2, 3): D + 3}
        for b, (t, c) in ((4, (2, 1)), (0, (0, 0)), (1, (0, 1)), (2, (1, 0)), (3, (1, 1))):
            base = O[t] + 8 * c
            for r in range(8):
                e(f"v_mul_f32 v{base+r}, v{rs[(t, 2*c+(r>>2))]}, v{base+r}")
            for r in range(4):
                e(f"v_cvt_pk_bf16_f32 v{base+r}, v{base+2*r}, v{base+2*r+1}")
            e.vm(f"buffer_store_dwordx4 {v(base,4)}, v{self.vHS}, s[{S_WS}:{S_WS+3}], s{TAB+b} offen sc1", "o")
        st()
        if CFG["stamps"]:
            e("s_waitcnt vmcnt(0)")
        st.finish(e, 0, self.vT)
        e("s_endpgm")
        lines = e.lines + e.slow + ["L_endB:"]
        return lines, check_hazards(e.lines, "B")


def kv_table():
    pairs = [(0, 3), (0, 4), (1, 3), (1, 4), (0, 5), (1, 5), (2, 4), (2, 5)]
    sigma = {(0, 0): 0, (0, 1): 1, (2, 0): 2, (1, 1): 3, (3, 0): 4, (3, 1): 5, (6, 0): 6,
             (4, 0): 7, (4, 1): 8, (5, 0): 9, (5, 1): 10, (7, 0): 11}
    words = []
    for w in range(4):
        masks, offs, tiles = [], [], []
        for p in (2 * w, 2 * w + 1):
            A_, B_ = pairs[p]
            for q4 in range(4):
                for hf in range(2):
                    m = 0
                    d = 32 * A_ + 8 * q4 + 4 * hf
                    if d < 80:
                        hd = d // 20
                        for j in range(32):
                            if B_ == 3:
                                ok = j // 20 == hd
                            elif B_ == 4:
                                ok = (32 + j) // 20 == hd
                            else:
                                ok = (j & 3) == hd if j < 8 else (False if j < 16 else hd == 3)
                            m |= int(ok) << j
                    if (p, q4 >> 1) not in sigma:
                        assert m == 0
                    masks.append(m)
            for half in range(2):
                offs.append(sigma.get((p, half), 0) * 2048)
            tiles += [AUX + A_ * 8192, AUX + B_ * 8192]
        words += masks + offs + tiles
    return words


def k1_entry():
    e = Emit()
    e("s_cmp_ge_u32 s2, 256\ns_cbranch_scc1 L_exit1")
    e(f"s_load_dwordx16 s[44:59], s[0:1], 0\ns_load_dwordx4 s[60:63], s[0:1], 64")
    e(f"v_and_b32 v1, 63, v0\nv_lshrrev_b32 v2, 6, v0")
    e(f"s_and_b32 s{sT0}, s2, 7\ns_lshr_b32 s{sT1}, s2, 3")
    e(f"v_readfirstlane_b32 s{sW}, v2")
    if CFG["map84"]:
        e(f"s_and_b32 s{sT2}, s{sT1}, 7\ns_lshr_b32 s{sT3}, s{sT1}, 3")
        e(f"s_and_b32 s{sRB}, s{sT0}, 1\ns_lshl_b32 s{sRB}, s{sRB}, 3\ns_add_u32 s{sRB}, s{sRB}, s{sT2}")
        e(f"s_and_b32 s{sID}, s{sT0}, 6\ns_and_b32 s{sT4}, s{sT3}, 1\ns_add_u32 s{sID}, s{sID}, s{sT4}")
        e(f"s_mul_i32 s{sT2}, s{sT2}, 5\ns_add_u32 s{sT2}, s{sT2}, 1\ns_lshr_b32 s{sT2}, s{sT2}, 2")
        e(f"s_mul_i32 s{sT4}, s{sT3}, 5\ns_add_u32 s{sT4}, s{sT4}, 1\ns_lshr_b32 s{sT4}, s{sT4}, 1")
        isb = 2
    else:
        e(f"s_and_b32 s{sT2}, s{sT1}, 3\ns_lshr_b32 s{sT3}, s{sT1}, 2")
        e(f"s_and_b32 s{sRB}, s{sT0}, 3\ns_lshl_b32 s{sRB}, s{sRB}, 2\ns_add_u32 s{sRB}, s{sRB}, s{sT2}")
        e(f"s_and_b32 s{sID}, s{sT0}, 4\ns_and_b32 s{sT4}, s{sT3}, 3\ns_add_u32 s{sID}, s{sID}, s{sT4}")
        e(f"s_mul_i32 s{sT2}, s{sT2}, 5\ns_add_u32 s{sT2}, s{sT2}, 1\ns_lshr_b32 s{sT2}, s{sT2}, 1")
        e(f"s_mul_i32 s{sT4}, s{sT3}, 5\ns_add_u32 s{sT4}, s{sT4}, 1\ns_lshr_b32 s{sT4}, s{sT4}, 2")
        isb = 4
    if CFG["rot"] == 1:
        e(f"s_add_u32 s{sRHO}, s{sT2}, s{sT4}\ns_cmp_ge_u32 s{sRHO}, 10\ns_cselect_b32 s{sT4}, 10, 0\ns_sub_u32 s{sRHO}, s{sRHO}, s{sT4}")
    elif CFG["rot"] == 2:
        e(f"s_mov_b32 s{sRHO}, s{sT2}")
    elif CFG["rot"] == 3:
        e(f"s_mov_b32 s{sRHO}, s{sT4}")
    else:
        e(f"s_mov_b32 s{sRHO}, 0")
    e(f"s_cmp_ge_u32 s{sT3}, {isb}\ns_cbranch_scc0 L_A\ns_branch L_B")
    e.label("L_exit1")
    e("s_endpgm")
    return e.lines


def k2():
    e = Emit()
    S_O = 8
    vL, vL16, vL16b, vO = 1, 2, 3, 4
    vAV = 8
    vRW = 12
    F, S_ = 16, 96
    XR = 176
    T = 188
    st = Stamper(e, 7)
    e("s_cmp_ge_u32 s2, 256\ns_cbranch_scc1 L_exit2")
    e(f"s_load_dwordx16 s[44:59], s[0:1], 0\ns_load_dwordx4 s[60:63], s[0:1], 64")
    st()
    e(f"v_and_b32 v{vL}, 63, v0\nv_lshrrev_b32 v2, 6, v0")
    e(f"s_and_b32 s{sT0}, s2, 7\ns_lshr_b32 s{sT1}, s2, 3")
    e(f"v_readfirstlane_b32 s{sW}, v2")
    e(f"s_lshl_b32 s{sRB}, s{sT0}, 2\ns_lshr_b32 s{sT2}, s{sT1}, 3\ns_add_u32 s{sRB}, s{sRB}, s{sT2}\ns_and_b32 s{sID}, s{sT1}, 7")
    e(f"v_lshlrev_b32 v{vL16}, 4, v{vL}\nv_add_u32 v{vL16b}, 4096, v{vL16}")
    for i in range(4):
        e(f"s_add_u32 s{sT0}, s{sW}, {i}\ns_and_b32 s{sT0}, s{sT0}, 3\ns_lshl_b32 s{sT1}, s{sT0}, 10\nv_add_u32 v{vAV+i}, s{sT1}, v{vL16}")
        if i:
            e(f"s_mul_i32 s{sT1}, s{sT0}, 15360\ns_add_u32 s{sT1}, s{sT1}, {(i-1)*5120}\nv_add_u32 v{vRW+i-1}, s{sT1}, v{vL16}")
        else:
            e(f"s_mul_i32 s{sT1}, s{sT0}, 15360\nv_add_u32 v{vRW+3}, s{sT1}, v{vL16}")
    sA, sB, sA9, sB9, sa, sb = 24, 25, 26, 27, 28, 29
    e(f"s_mul_i32 s{sA}, s{sRB}, 74\ns_add_u32 s{sA}, s{sA}, s{sW}\ns_lshl_b32 s{sA}, s{sA}, 12")
    e(f"s_mul_i32 s{sB}, s{sID}, 74\ns_add_u32 s{sB}, s{sB}, s{sW}\ns_mul_i32 s{sB}, s{sB}, 5120\ns_add_u32 s{sB}, s{sB}, {WS_B2}")
    e(f"s_cmp_lt_u32 s{sW}, 2\ns_cselect_b32 s{sA9}, s{sA}, {OOB}\ns_cselect_b32 s{sB9}, s{sB}, {OOB}")
    e("s_waitcnt lgkmcnt(0)")
    st()
    srd(e, S_WS, P_WS, WS_SIZE)
    NS = 19
    D = CFG.get("depth", 3)

    def ks0(i):
        return 4 * i if i < 10 else 54 + 4 * (i - 10) if i < 15 else 38 + 4 * (i - 15)

    def loads(i):
        fb = 36 * (i % (D + 1))
        it = [f"s_add_u32 s{sa}, s{sA9 if i == 9 else sA}, {ks0(i)*4096}", f"s_add_u32 s{sb}, s{sB9 if i == 9 else sB}, {ks0(i)*5120}"]
        m = []
        for j in range(5):
            m.append(f"buffer_load_dwordx4 {a(fb+16+4*j,4)}, v{vL16 if j < 4 else vL16b}, s[{S_WS}:{S_WS+3}], s{sb} offen offset:{(j&3)*1024}")
            if j < 4:
                m.append(f"buffer_load_dwordx4 {a(fb+4*j,4)}, v{vAV+j}, s[{S_WS}:{S_WS+3}], s{sa} offen")
        return it, m

    for i in range(D):
        it, m = loads(i)
        for x in it:
            e(x)
        for x in m:
            e.vm(x, ("l", i))
    srd(e, S_X, P_X, 2048 * 1280)
    srd(e, S_O, P_OUT, 2048 * 1280)
    e(f"v_and_b32 v{T}, 15, v{vL}\nv_mul_u32_u24 v{T}, 1280, v{T}\nv_lshrrev_b32 v{T+1}, 4, v{vL}\nv_lshl_add_u32 v{vO}, v{T+1}, 3, v{T}")
    sO = 30
    e(f"s_lshl_b32 s{sO}, s{sRB}, 2\ns_add_u32 s{sO}, s{sO}, s{sW}\ns_mul_i32 s{sO}, s{sO}, {16*1280}\ns_mul_i32 s{sT0}, s{sID}, 160\ns_add_u32 s{sO}, s{sO}, s{sT0}")
    for i in range(3):
        e(f"v_add_u32 v{T+4+i}, {61440}, v{vRW+i}")
    e(f"v_add_u32 v{T+7}, {61440}, v{vRW+3}")
    st()
    for i in range(NS):
        fb = 36 * (i % (D + 1))
        acc = S_ if 10 <= i < 15 else F
        first = i in (0, 10)
        q = []
        if i + D < NS:
            it, m = loads(i + D)
            q = [(x, None) for x in it] + [(x, ("l", i + D)) for x in m]
        if i == 12:
            q += [(f"buffer_load_dwordx2 {v(XR+2*j,2)}, v{vO}, s[{S_X}:{S_X+3}], s{sO} offen offset:{32*j}", "x") for j in range(5)]
        w = []
        if 15 <= i < 18:
            k = i - 14
            w = [f"ds_write_b128 v{T+4+k-1}, {v(S_+20*k+4*j,4)} offset:{j*1024}" for j in range(5)]
        e.wait(vm=("l", i))
        if i == 0:
            st()
        order = [(tt, j) for tt in (1, 2, 3, 0) for j in range(5)]
        for n, (tt, j) in enumerate(order):
            C = v(acc + 20 * tt + 4 * j, 4)
            e(f"v_mfma_f32_16x16x32_bf16 {C}, {a(fb+16+4*j,4)}, {a(fb+4*tt,4)}, {'0' if first else C}")
            if q:
                x, tag = q.pop(0)
                if tag is None:
                    e(x)
                else:
                    e.vm(x, tag)
            elif w and n >= 10 and n % 2 == 0:
                e.lg(w.pop(0), "w")
            if i == NS - 1 and n >= 9:
                k, jj = divmod(n - 9, 5)
                e.lg(f"ds_write_b128 v{vRW+k}, {v(F+20*(k+1)+4*jj,4)} offset:{jj*1024}", "w")
        for x in w:
            e.lg(x, "w")
        assert not q
    for n in range(11, 15):
        k, jj = divmod(n, 5)
        e.lg(f"ds_write_b128 v{vRW+k}, {v(F+20*(k+1)+4*jj,4)} offset:{jj*1024}", "w")
    st()
    e.wait(lg="all")
    e("s_barrier")
    for j in range(5):
        for k in range(3):
            e.lg(f"ds_read_b128 {v(F+20+20*k+4*j,4)}, v{vRW+3} offset:{k*5120+j*1024}", ("f", j))
        for k in range(3):
            e.lg(f"ds_read_b128 {v(S_+20+20*k+4*j,4)}, v{T+7} offset:{k*5120+j*1024}", ("f", j))
        if j == 1:
            e.wait(vm="x")
    e(f"s_mov_b32 s{sT0}, {f32(-LOG2E)}")
    for j in range(5):
        e.wait(lg=("f", j))
        f, s_ = F + 4 * j, S_ + 4 * j
        for base in (f, s_):
            for h in (0, 2):
                e(f"v_pk_add_f32 {v(base+h,2)}, {v(base+h,2)}, {v(base+20+h,2)}")
                e(f"v_pk_add_f32 {v(base+40+h,2)}, {v(base+40+h,2)}, {v(base+60+h,2)}")
            for h in (0, 2):
                e(f"v_pk_add_f32 {v(base+h,2)}, {v(base+h,2)}, {v(base+40+h,2)}")
        t = f + 20
        x = s_ + 20
        for r in range(4):
            e(f"v_mul_f32 v{t+r}, s{sT0}, v{f+r}")
        for r in range(4):
            e(f"v_exp_f32 v{t+r}, v{t+r}")
        for h in (0, 2):
            e(f"v_pk_mul_f32 {v(f+h,2)}, {v(f+h,2)}, {v(s_+h,2)}")
        for r in range(4):
            e(f"v_add_f32 v{t+r}, 1.0, v{t+r}")
        for r in range(4):
            e(f"v_rcp_f32 v{t+r}, v{t+r}")
        for h in range(2):
            e(f"v_lshlrev_b32 v{x+2*h}, 16, v{XR+2*j+h}\nv_and_b32 v{x+2*h+1}, 0xffff0000, v{XR+2*j+h}")
        for h in (0, 2):
            e(f"v_pk_fma_f32 {v(f+h,2)}, {v(f+h,2)}, {v(t+h,2)}, {v(x+h,2)}")
        e(f"v_cvt_pk_bf16_f32 v{f}, v{f}, v{f+1}\nv_cvt_pk_bf16_f32 v{f+1}, v{f+2}, v{f+3}")
        e.vm(f"buffer_store_dwordx2 {v(f,2)}, v{vO}, s[{S_O}:{S_O+3}], s{sO} offen offset:{32*j}", "o")
    st()
    if CFG["stamps"]:
        e("s_waitcnt vmcnt(0)")
    st.finish(e, 1, T)
    e.label("L_exit2")
    e("s_endpgm")
    return e.lines, check_hazards(e.lines, "K2")


def kd(name, nv, acc):
    return f""".p2align 6
.amdhsa_kernel {name}
  .amdhsa_next_free_vgpr {nv}
  .amdhsa_next_free_sgpr 102
  .amdhsa_accum_offset {acc}
  .amdhsa_group_segment_fixed_size 0
  .amdhsa_kernarg_size 80
  .amdhsa_user_sgpr_count 2
  .amdhsa_user_sgpr_kernarg_segment_ptr 1
  .amdhsa_system_sgpr_workgroup_id_x 1
  .amdhsa_float_denorm_mode_32 3
.end_amdhsa_kernel
"""


def main():
    la, ea = K1("A").path_A()
    lb, eb = K1("B").path_B()
    l2, e2 = k2()
    errs = ea + eb + e2 + check_hazards(k1_entry(), "entry")
    for x in errs:
        print(x, file=sys.stderr)
    out = []
    out.append("; @launch kernel=p1_kernel grid=(256,1,1) block=(256,1,1) lds=163840")
    out.append("; @launch kernel=p2_kernel grid=(256,1,1) block=(256,1,1) lds=122880")
    out.append('.amdgcn_target "amdgcn-amd-amdhsa--gfx950"\n.text')
    out.append(".globl p1_kernel\n.p2align 8\n.type p1_kernel,@function\np1_kernel:")
    out += k1_entry()
    out.append(".p2align 6")
    out += la
    out.append("s_endpgm\n.p2align 6")
    out += lb
    out.append("s_endpgm\n.p2align 6\n.type kvtab,@object\nkvtab:")
    tab = kv_table()
    for i in range(0, len(tab), 8):
        out.append(".long " + ", ".join("0x%08x" % x for x in tab[i:i + 8]))
    out.append(f".size kvtab, {4*len(tab)}")
    out.append(".globl p2_kernel\n.p2align 8\n.type p2_kernel,@function\np2_kernel:")
    out += l2
    out.append('.section .rodata,"a"')
    out.append(kd("p1_kernel", 512, 256))
    out.append(kd("p2_kernel", 512, 256))
    open(sys.argv[1], "w").write("\n".join(out))
    print("lines", len(la), len(lb), len(l2), "hazards", len(errs), file=sys.stderr)


main()
```

```python
import re


def v(n, c=1):
    return f"v{n}" if c == 1 else f"v[{n}:{n + c - 1}]"


def a(n, c=1):
    return f"a{n}" if c == 1 else f"a[{n}:{n + c - 1}]"


def s(n, c=1):
    return f"s{n}" if c == 1 else f"s[{n}:{n + c - 1}]"


def R(spec, off=0, c=1):
    f, n = spec
    return (v if f == "v" else a)(n + off, c)


class Emit:
    def __init__(self):
        self.lines = []
        self.vmq = []
        self.lgq = []
        self.uid = 0
        self.slow = []
        self.issued = {}
        self.free_tags = []
        self.t = 0.0
        self.fifo = []
        self.tlast = -1e9
        self.done = {}
        self.lat = lambda tag: 300
        self.svc, self.cap, self.space = 72.0, 8.0, 64.0
        self.stall = 0.0

    def fork(self):
        e = Emit()
        e.vmq = list(self.vmq)
        e.lgq = list(self.lgq)
        e.issued = dict(self.issued)
        e.t, e.fifo, e.tlast, e.done = self.t, list(self.fifo), self.tlast, dict(self.done)
        e.lat, e.svc, e.cap, e.space, e.stall = self.lat, self.svc, self.cap, self.space, self.stall
        return e

    def __call__(self, text):
        for t in text.strip().split("\n"):
            t = t.strip()
            if t:
                self.lines.append(t)

    def label(self, name):
        self.lines.append(name + ":")

    def vm(self, text, tag=None, maybe=False, w=1.0):
        self.lines.append(text)
        self.vmq.append((tag, maybe))
        self.issued[tag] = self.issued.get(tag, 0) + 1
        if tag in self.free_tags:
            return
        self.nops = getattr(self, "nops", 0) + 1
        if text.startswith("buffer_load_dword ") and w == 1.0:
            w = 0.3
        t0 = self.ready(w)
        self.stall += t0 - self.t
        self.t = t0
        small = text.startswith("buffer_load_dword ")
        self.tlast = self.t - (self.space / 2 if small else 0)
        c = max(self.t + self.lat(tag), (self.fifo[-1][0] if self.fifo else 0) + self.svc * w)
        self.fifo.append((c, w))
        self.done[tag] = c

    def fake(self, tag):
        self.tlast = self.t
        c = max(self.t + self.lat(tag), (self.fifo[-1][0] if self.fifo else 0) + self.svc)
        self.fifo.append((c, 1.0))

    def ready(self, w=1.0, at=None):
        t = max(self.t if at is None else at, self.tlast + self.space)
        pend = [(c, x) for c, x in self.fifo if c > t]
        tot = sum(x for _, x in pend)
        for c, x in pend:
            if tot + w <= self.cap:
                break
            tot -= x
            t = c
        return t

    def can(self, dt=0.0, w=1.0):
        return self.ready(w, self.t + dt) <= self.t + dt + 1

    def eta(self, tags):
        last = -1
        for i, (t, _) in enumerate(self.vmq):
            if t in tags:
                last = i
        return max([self.done.get(t, 0) for t, _ in self.vmq[:last + 1] if t in tags or True] + [0]) if last >= 0 else 0

    def tick(self, n):
        self.t += n

    def lg(self, text, tag=None):
        self.lines.append(text)
        self.lgq.append((tag, False))
        self.issued[tag] = self.issued.get(tag, 0) + 1

    @staticmethod
    def _need(q, tags, cap):
        if tags == "all":
            if not q:
                return None, q
            return 0, []
        if not isinstance(tags, (list, tuple, set)) or (isinstance(tags, tuple)):
            tags = [tags]
        last = -1
        for i, (t, _) in enumerate(q):
            if t in tags:
                last = i
        if last < 0:
            return None, q
        n = sum(1 for (_, m) in q[last + 1:] if not m)
        if n > cap:
            k = len(q)
            return cap, q[max(last + 1, k - cap):]
        return n, q[last + 1:]

    def wait(self, vm=None, lg=None):
        parts = []
        if vm is not None:
            tl = [vm] if isinstance(vm, (tuple, str)) else list(vm)
            c = self.eta(tl)
            if c > self.t:
                self.stall += c - self.t
                self.t = c
            n, self.vmq = self._need(self.vmq, vm, 63)
            if n is not None:
                parts.append(f"vmcnt({n})")
        if lg is not None:
            n, self.lgq = self._need(self.lgq, lg, 15)
            if n is not None:
                parts.append(f"lgkmcnt({n})")
        if parts:
            self.lines.append("s_waitcnt " + " ".join(parts))
            return 1
        return 0

    def pending_vm(self, tag):
        return any(t == tag for t, _ in self.vmq)

    def nop(self, n):
        while n > 0:
            k = min(n, 16)
            self.lines.append(f"s_nop {k - 1}")
            n -= k


_REG = re.compile(r"^-?\|?([vas])(?:(\d+)|\[(\d+):(\d+)\])\|?$")
TRANS = ("v_exp_f32", "v_log_f32", "v_rcp_f32", "v_rsq_f32", "v_sqrt_f32", "v_sin_f32", "v_cos_f32")


def regs(tok):
    tok = tok.strip()
    if tok in ("vcc",):
        return {("s", 106), ("s", 107)}
    if tok == "vcc_lo":
        return {("s", 106)}
    if tok == "vcc_hi":
        return {("s", 107)}
    if tok == "m0":
        return {("s", 124)}
    if tok == "exec":
        return {("s", 126), ("s", 127)}
    if tok == "exec_lo":
        return {("s", 126)}
    if tok == "exec_hi":
        return {("s", 127)}
    m = _REG.match(tok)
    if not m:
        return set()
    f = m.group(1)
    if m.group(2) is not None:
        return {(f, int(m.group(2)))}
    return {(f, i) for i in range(int(m.group(3)), int(m.group(4)) + 1)}


class Ins:
    def __init__(self, text):
        self.text = text
        t = text.split(";")[0].strip()
        p = t.split(None, 1)
        self.op = p[0]
        rest = p[1] if len(p) > 1 else ""
        ops = [x.strip() for x in rest.split(",")]
        if ops:
            ops[-1] = ops[-1].split()[0] if ops[-1] else ""
        self.mods = rest
        self.ops = ops
        op = self.op
        self.kind = "other"
        self.rd = set()
        self.wr = set()
        self.srcC = set()
        self.srcAB = set()
        self.passes = 0
        self.states = 1
        self.stdata = set()
        if op == "s_nop":
            self.kind = "nop"
            self.states = int(ops[0]) + 1
        elif op.startswith("v_mfma"):
            self.kind = "mfma"
            self.wr = regs(ops[0])
            self.srcAB = regs(ops[1]) | regs(ops[2])
            self.srcC = regs(ops[3])
            self.rd = self.srcAB | self.srcC
            self.passes = 8 if "32x32x16" in op else 4 if "16x16x32" in op else 2 if "4x4x4" in op else 16
        elif op.startswith("v_"):
            self.kind = "valu"
            self.wr = regs(ops[0])
            for o in ops[1:]:
                self.rd |= regs(o)
            if op.startswith(("v_fmac", "v_dot2c", "v_pk_fmac")):
                self.rd |= self.wr
            if op.startswith("v_permlane"):
                self.wr = regs(ops[0]) | regs(ops[1])
                self.rd = set(self.wr)
            if op.startswith(("v_add_co", "v_sub_co", "v_addc_co")):
                self.wr |= regs(ops[1])
        elif op.startswith("ds_"):
            self.kind = "ds"
            if op.startswith(("ds_read", "ds_bpermute", "ds_swizzle")):
                self.wr = regs(ops[0])
                for o in ops[1:]:
                    self.rd |= regs(o)
            else:
                for o in ops:
                    self.rd |= regs(o)
        elif op.startswith("buffer_"):
            self.kind = "vmem"
            if op in ("buffer_inv", "buffer_wbl2"):
                pass
            elif " lds" in " " + rest:
                for o in ops:
                    self.rd |= regs(o)
                self.rd |= regs("m0")
                self.ldsdma = True
            elif op.startswith("buffer_load"):
                self.wr = regs(ops[0])
                for o in ops[1:]:
                    self.rd |= regs(o)
            else:
                for o in ops:
                    self.rd |= regs(o)
                if op.endswith(("x3", "x4")):
                    self.stdata = regs(ops[0])
                if "atomic" in op and " sc0" in rest:
                    self.wr = regs(ops[0])
        elif op.startswith("s_"):
            self.kind = "salu"
            if op.startswith(("s_cmp", "s_cbranch", "s_branch", "s_waitcnt", "s_barrier", "s_endpgm", "s_sleep", "s_setprio",
                              "s_bitcmp")):
                for o in ops:
                    self.rd |= regs(o)
            else:
                self.wr = regs(ops[0])
                for o in ops[1:]:
                    self.rd |= regs(o)
        self.trans = op.replace("_e64", "").replace("_e32", "") in TRANS


def check_hazards(lines, name=""):
    ins = [Ins(l) for l in lines if not l.endswith(":") and not l.startswith((".", ";"))]
    errs = []
    W = 24
    for i, c in enumerate(ins):
        dist = 0
        for j in range(i - 1, max(-1, i - W - 1), -1):
            p = ins[j]
            need = 0
            vw = {r for r in p.wr if r[0] in "va"}
            sw = {r for r in p.wr if r[0] == "s"}
            if p.kind == "mfma":
                tab = {2: 0, 4: 1, 8: 2, 16: 3}[p.passes]
                if c.kind == "mfma":
                    if vw & c.srcAB:
                        need = max(need, (5, 8, 12, 20)[tab])
                    if vw & c.srcC:
                        if vw == c.srcC and p.passes == c.passes:
                            need = max(need, (2, 0, 0, 0)[tab])
                        else:
                            need = max(need, (4, 6, 10, 18)[tab])
                    elif vw & c.wr:
                        need = max(need, (4, 6, 10, 18)[tab])
                elif c.kind in ("valu", "ds", "vmem"):
                    if vw & (c.rd | c.wr):
                        need = max(need, (5, 8, 12, 20)[tab])
                    if c.kind == "valu" and p.srcC & c.wr:
                        need = max(need, (1, 3, 7, 15)[tab])
            if p.kind == "valu":
                if c.kind == "mfma" and vw & c.rd:
                    need = max(need, 2)
                if c.kind == "valu":
                    if p.trans and vw & c.rd:
                        need = max(need, 1)
                    if c.op.startswith("v_permlane") and vw & c.rd:
                        need = max(need, 2)
                    if c.op.startswith(("v_readfirstlane", "v_readlane")) and vw & c.rd:
                        need = max(need, 1)
                    if sw & c.rd:
                        need = max(need, 2)
                    if ("dpp" in c.op or "row_" in c.mods or "quad_perm" in c.mods) and vw & c.rd:
                        need = max(need, 2)
                    if ("sdwa" in p.op or "op_sel" in p.mods) and vw & (c.rd | c.wr):
                        need = max(need, 1)
                if c.kind == "vmem" and sw & c.rd:
                    need = max(need, 5)
            if p.kind == "salu" and ("s", 124) in sw and c.kind == "vmem" and ("s", 124) in c.rd:
                need = max(need, 1)
            if p.kind == "vmem" and p.stdata and p.stdata & c.wr:
                need = max(need, 2 if c.kind in ("valu", "mfma") else 1)
            if need > dist:
                errs.append(f"{name}: need {need} have {dist}:\n   {p.text}\n   {c.text}")
            dist += p.states
            if dist >= 20:
                break
    return errs


def check_async(lines, name="", init_written=("v0",)):
    errs = []
    vmq, lgq = [], []
    written = set()
    for r in init_written:
        written |= regs(r)
    lastw = {}
    for l in lines:
        if l.endswith(":") or l.startswith((".", ";")):
            continue
        c = Ins(l)
        if c.op == "s_waitcnt":
            m = re.search(r"vmcnt\((\d+)\)", l)
            if m:
                n = int(m.group(1))
                vmq = vmq[len(vmq) - n:] if n < len(vmq) else vmq
                if n == 0:
                    vmq = []
            m = re.search(r"lgkmcnt\((\d+)\)", l)
            if m:
                n = int(m.group(1))
                lgq = lgq[len(lgq) - n:] if n < len(lgq) else lgq
                if n == 0:
                    lgq = []
            continue
        pend = set()
        for d in vmq + lgq:
            pend |= d
        use = {r for r in (c.rd | c.wr) if r[0] in "va"}
        if use & pend:
            errs.append(f"{name}: in-flight register used: {l}  {sorted(use & pend)[:4]}")
        rdv = {r for r in c.rd if r[0] in "va"}
        if c.op.startswith("v_writelane"):
            rdv = set()
        if rdv - written:
            errs.append(f"{name}: never-written register read: {l} {sorted(rdv - written)[:4]}")
        if c.kind == "mfma" and "32x32x16" in c.op:
            for r in c.srcAB:
                if r[0] == "a" and r[1] < 160 and lastw.get(r) == "ds_read_b128":
                    errs.append(f"{name}: raw x used: {l}")
                    break
        for r in c.wr:
            lastw[r] = c.op
        written |= c.wr
        if c.kind == "vmem" and c.op not in ("buffer_inv", "buffer_wbl2"):
            vmq.append({r for r in c.wr if r[0] in "va"})
        elif c.kind == "ds":
            lgq.append({r for r in c.wr if r[0] in "va"})
    return errs
```

```python
import sys, struct
from emit import *

NAME = "recurrent_scan__linear_attn_block__swiglu_ffn__prompt"
CFG = dict(map84=0, rot=4, stamps=0, outsc="", lh=2000, lm=550, ll=350, ls=800, lm2=560, lmB=800, slp=2, cap=83, svc=74, space=64,
           pkchk=9, pk2chk=13, pqsig=5, e1sig=25, e1chk=33, e2at=0, b3=28, bq=30, res=6)
for arg in sys.argv[2:]:
    k, val = arg.split("=")
    CFG[k] = int(val) if val.lstrip("-").isdigit() else val.replace("+", " ")

WS_A2 = 0
WS_B2 = 0xA00000
WS_PQ = 0xD00000
WS_KV = 0x1000000
WS_CNT = WS_KV + 64 * 1024
WS_ST = 0x1000000 + 208 * 1024
WS_SIZE = 0x1100000
OOB = 0x40000000
C_PQ, C_E1, C_E2, C_O, C_L, C_KV, C_PK, C_BH = [128 * i for i in range(8)]
C_PK2 = C_PK + 64
AUX = 80 * 1024
CKV = 48 * 1024
KFX = 68 * 1024
XB = 0
FREG = 100 * 1024


def f32(x):
    return "0x%08x" % struct.unpack("<I", struct.pack("<f", x))[0]


LOG2E = 1.4426950408889634
LN2 = 0.6931471805599453

sA2, sB2, sPK0 = 0, 1, 3
S_X, S_W, S_WS, S_DBG, S_P = 4, 8, 12, 16, 20
SEG1, SEG2 = 24, 34
P_X, P_QKV, P_WO, P_BX, P_G, P_U, P_D, P_OUT, P_DBG, P_WS = range(44, 64, 2)
sPKSZ, sSTG, sCME, sCID = 60, 61, 62, 63
sW, sRB, sID, sRHO, sT0, sT1, sT2, sT3 = range(64, 72)
sCP2 = sRHO
XOFF = 72
sa, sb, sO, sQ0, sQ1 = 72, 73, 74, 75, 76
OST = 77
sW4K, sHB, sLN2, sEPS, sGU0, sGU1 = 82, 83, 84, 85, 86, 87
PKST = 88
sONE, sINI = P_G, P_G + 1
sP0, sP1 = 46, 47
sCPK = 48
sSTAMP, sPK1, sSPIN, sT4, sT5 = 96, 98, 99, 100, 101
sW5K, sAO = P_U, P_U + 1

vL16B, vLANE, vHS, vL16, vK1, vC, vK2, vR = range(8)
vTR, vWV2, vT = 8, 12, 16
vPOLL, vSIG, vONE, vL4, vST, vKTR = 24, 25, 26, 27, 28, 29
vSC, vXR, vONES, vS = 32, 40, 44, 48
vXV, vPA = 156, vT + 2
vCT, vID, vNM, vWV1, vMEAN = 112, 144, 146, 150, 155
AARCH = 160
ARCH = [0, 1, 2, 3, 8, 9]
FR = 160
ACC = [32, 96]
WS = f"s[{S_WS}:{S_WS+3}]"

H1 = [a(x, 4) for x in list(range(0, 64, 4)) + list(range(128, 160, 4)) + list(range(208, 256, 4))]
vAV = vWV2
TRW = [vTR, vTR + 2, vKTR]
KTR = [vTR, vTR + 1, 31]
ACCF = [96 + 4 * i for i in range(16)] + [224 + 4 * i for i in range(4)]
ACCS = [240, 244, 248, 252, 92]
XUN, XRAW = 32, 52
INF = 10 ** 6
RA4, RB4, RA2, RB2 = [88, 89, 90, 91], [92, 93, 94, 95], [50, 51], [56, 57]
RA5, RB5 = [27, 28, 29, 30, 31], [32, 33, 60, 61, 49]
sLA, sLB = 3, 98
TT = (1, 2, 3, 0)


def pos0(i):
    return 4 * i if i < 4 else 14 + 4 * (i - 4)


def slot_time(i):
    return i if i < 6 else i + 5


def srd(e, r, ptr, size):
    e(f"s_mov_b32 s{r}, s{ptr}\ns_mov_b32 s{r+1}, s{ptr+1}\ns_mov_b32 s{r+2}, {size}\ns_mov_b32 s{r+3}, 0x20000")


class Stamper:
    def __init__(self, n=0):
        self.n = n

    def __call__(self, e, last=False):
        if not CFG["stamps"] or (CFG["stamps"] == 3 and self.n >= 2 and not last):
            return
        if self.n > 0:
            e(f"v_writelane_b32 v{vST}, s{sSTAMP}, {self.n-1}")
        else:
            e("s_memrealtime vcc")
        e(f"{'s_memtime' if CFG['stamps'] != 2 else 's_memrealtime'} s[{sSTAMP}:{sSTAMP+1}]")
        if self.n == 1:
            e(f"v_writelane_b32 v{vST}, vcc_lo, 62")
        self.n += 1

    def finish(self, e):
        if not CFG["stamps"]:
            return
        e("s_waitcnt vmcnt(0)")
        self(e, True)
        e(f"s_memrealtime vcc\ns_waitcnt lgkmcnt(0)\nv_writelane_b32 v{vST}, s{sSTAMP}, {self.n-1}")
        e(f"v_writelane_b32 v{vST}, vcc_lo, 63\nv_writelane_b32 v{vST}, {self.n}, 61\nv_writelane_b32 v{vST}, s{sT5}, 60")
        e(f"s_lshl_b32 s{sT0}, s2, 2\ns_add_u32 s{sT0}, s{sT0}, s{sW}\ns_lshl_b32 s{sT0}, s{sT0}, 8\ns_add_u32 s{sT0}, s{sT0}, {WS_ST}")
        e(f"buffer_store_dword v{vST}, v{vL4}, {WS}, s{sT0} offen")


_lbl = [0]


class Poll:
    def __init__(self, vreg, target, addr, bit=0):
        self.v, self.t, self.bit = vreg, target, bit
        self.text = f"buffer_load_dword v{vreg}, {addr} sc1"
        _lbl[0] += 1
        self.n = _lbl[0]

    def issue(self, e):
        e.vm(self.text, ("poll", self.n))

    def check(self, e):
        _lbl[0] += 1
        n = _lbl[0]
        e.wait(vm=("poll", self.n))
        cmp_ = f"v_cmp_gt_u32 vcc, {self.t}, v{self.v}"
        e(cmp_)
        e(f"s_cbranch_vccnz L_spin{n}")
        e.label(f"L_back{n}")
        dbg = [f"s_bitset1_b32 s{sT5}, {self.bit}"] if CFG["stamps"] else []
        e.slow += [f"L_spin{n}:"] + dbg + [f"s_mov_b32 s{sSPIN}, 0", f"L_spinl{n}:"] + ([f"s_sleep {CFG['slp']}"] if CFG.get("slp") else []) + [self.text, f"s_add_u32 s{sSPIN}, s{sSPIN}, 1",
                                           f"s_cmp_gt_u32 s{sSPIN}, 0x80000", f"s_cbranch_scc1 L_spinx{n}", "s_waitcnt vmcnt(0)", cmp_,
                                           f"s_cbranch_vccnz L_spinl{n}", f"L_spinx{n}:", "s_waitcnt vmcnt(0)", f"s_branch L_back{n}"]


def signal(e, sreg, off, cond=None):
    _lbl[0] += 1
    e(cond or f"s_bitcmp1_b32 s{sW}, 0")
    e(f"s_cbranch_scc1 L_sk{_lbl[0]}\ns_buffer_atomic_add s{sONE}, {WS}, s{sreg} offset:{off}")
    e.label(f"L_sk{_lbl[0]}")


class SPoll:
    def __init__(self, target, addrs, bit):
        self.t, self.addrs, self.bit = target, addrs, bit

    def ops(self):
        return [f"s_buffer_atomic_add s{sP0+k}, {WS}, s{r} offset:{o} glc" for k, (r, o) in enumerate(self.addrs)]

    def issue(self, e):
        _lbl[0] += 1
        e(f"s_cmp_lg_u32 s{sW}, 0\ns_cselect_b64 s[{sP0}:{sP1}], -1, 0\ns_cbranch_scc1 L_sk{_lbl[0]}")
        e("\n".join(self.ops()))
        e.label(f"L_sk{_lbl[0]}")

    def check(self, e, vm=None, nowait=False):
        _lbl[0] += 1
        n = _lbl[0]
        if not nowait:
            e.lgq.append(("smem", False))
            e.wait(vm=vm, lg="all")
        cmp_ = ([f"s_min_u32 s{sP0}, s{sP0}, s{sP1}"] if len(self.addrs) > 1 else []) + [f"s_cmp_ge_u32 s{sP0}, {self.t}"]
        e("\n".join(cmp_))
        e(f"s_cbranch_scc0 L_spin{n}")
        e.label(f"L_back{n}")
        dbg = [f"s_bitset1_b32 s{sT5}, {self.bit}"] if CFG["stamps"] else []
        e.slow += ([f"L_spin{n}:"] + dbg + [f"s_mov_b32 s{sSPIN}, 0", f"L_spinl{n}:", f"s_sleep {CFG['slp']}", f"s_mov_b64 s[{sP0}:{sP1}], 0"]
                   + self.ops() + [f"s_add_u32 s{sSPIN}, s{sSPIN}, 1", "s_waitcnt lgkmcnt(0)", f"s_cmp_gt_u32 s{sSPIN}, 0x80000",
                                   f"s_cbranch_scc1 L_back{n}"] + cmp_ + [f"s_cbranch_scc0 L_spinl{n}", f"s_branch L_back{n}"])


def Areg(u):
    S = u >> 2
    return v(AARCH + 16 * ARCH.index(S) + 4 * (u & 3), 4) if S in ARCH else a(4 * u, 4)


def run_item(e, it):
    if callable(it[0]):
        it[0](e)
    else:
        e(it[0])


def fill(e, q, budget, memslot=True):
    while q and (budget > 0 or q[0][1] == 0):
        it = q[0]
        ismem = len(it) > 2
        if ismem and not memslot:
            break
        if it[1] > budget:
            break
        q.pop(0)
        run_item(e, it)
        budget -= it[1]
        if not ismem:
            memslot = False
    return budget


def drain(e, q):
    for it in q:
        run_item(e, it)
    q.clear()


class M:
    def __init__(self, pre, go, dl=0.0, at=0, prio=False, key=None, cls=None):
        self.pre, self.go, self.dl, self.at, self.prio = pre or (lambda e: 0), go, dl, at, prio
        self.key, self.cls, self.w = key, cls, 1.0


def lines_to_items(text):
    return [(t.strip(), 1) for t in text.strip().split("\n") if t.strip()]


CUR = ["A"]


def lat1(tag):
    k = tag[0] if isinstance(tag, tuple) else tag
    if k == "w":
        if CFG.get("touch", 1):
            return CFG.get("lw", 550)
        return CFG["lh"] if tag[1] % 10 < 2 else CFG["ll"]
    if k in ("pk", "t2"):
        return CFG["lh"] if CUR[0] == "A" else CFG.get("lhB", 1500)
    if k in ("h", "pks", "o", "sig", "at"):
        return CFG["ls"]
    return CFG["lm"]


def lat2(tag):
    k = tag[0] if isinstance(tag, tuple) else tag
    return CFG["ls"] if k in ("h", "o", "sig") else CFG["lm2"]


class Gen:
    def __init__(self):
        self.m0key = None

    def sim_start(self, e, pending):
        e.t, e.tlast, e.stall, e.done = 0.0, -100, 0.0, {}
        e.lat, e.svc, e.cap, e.space = lat1, CFG["svc"], CFG["cap"] / 10, CFG["space"]
        e.fifo = [(e.svc * (k + 1), 1.0) for k in range(pending)]

    def pick(self, pf, now, force=False):
        pf.sort(key=lambda m: m.dl)
        earlier = 0
        for k, m in enumerate(pf):
            extra = self.ring_need if m.dl > 7 else 0
            if m.at <= now and (m.key is None or len(self.pool) > (0 if force else min(CFG["res"], earlier) + extra)):
                pf.insert(0, pf.pop(k))
                return True
            if m.key is not None:
                earlier += 1
        return False

    def alloc(self, key):
        self.loc[key] = self.pool.pop(0)
        return self.loc[key]

    def gate(self, pf, cls, at=0):
        for m in pf:
            if m.cls == cls:
                m.at = at

    def rep(self, e, what):
        print(f"   sim {self.typ} {what}: t={e.t:.0f} stall={e.stall:.0f}", file=sys.stderr)

    def set_m0(self, e, key, text):
        if self.m0key != key:
            e(text)
            self.m0key = key
            return 1
        return 0

    def xdma_m0(self, e, i):
        return self.set_m0(e, ("x", i), f"s_add_u32 m0, s{sSTG}, {(i % 5) * 4096}")

    def xdma(self, e, i, j):
        assert self.m0key == ("x", i)
        e.vm(f"buffer_load_dwordx4 v{vXV+j}, s[{S_X}:{S_X+3}], s{XOFF+i} offen offset:{j*1024} lds", ("x", i))

    def head(self, e, st):
        L, T = vLANE, vSC
        e("s_cmp_ge_u32 s2, 256\ns_cbranch_scc1 L_exit")
        e("s_load_dwordx16 s[44:59], s[0:1], 0\ns_load_dwordx4 s[60:63], s[0:1], 64")
        st(e)
        e(f"s_getpc_b64 s[{S_P}:{S_P+1}]")
        e.label("L_pc")
        e(f"v_lshrrev_b32 v{T}, 6, v0\nv_and_b32 v{T+1}, 7, v0\ns_lshr_b32 s{sT1}, s2, 3")
        e(f"v_readfirstlane_b32 s{sW}, v{T}")
        e(f"v_lshlrev_b32 v{T+2}, 7, v{T+1}\nv_lshl_add_u32 v{T+2}, v{T}, 10, v{T+2}")
        e(f"s_mov_b32 s{S_P+2}, L_codeend-L_pc\ns_mov_b32 s{S_P+3}, 0x20000\ns_lshl_b32 s{sT0}, s{sT1}, 12")
        e.vm(f"buffer_load_dword v{T+7}, v{T+2}, s[{S_P}:{S_P+3}], s{sT0} offen", "cpf")
        e(f"v_and_b32 v{L}, 63, v0\ns_and_b32 s{sT0}, s2, 7")
        if CFG["map84"]:
            e(f"s_and_b32 s{sT2}, s{sT1}, 7\ns_lshr_b32 s{sT3}, s{sT1}, 3")
            e(f"s_and_b32 s{sRB}, s{sT0}, 1\ns_lshl_b32 s{sRB}, s{sRB}, 3\ns_add_u32 s{sRB}, s{sRB}, s{sT2}")
            e(f"s_and_b32 s{sID}, s{sT0}, 6\ns_and_b32 s{sT4}, s{sT3}, 1\ns_add_u32 s{sID}, s{sID}, s{sT4}")
            e(f"s_mul_i32 s{sT2}, s{sT2}, 5\ns_add_u32 s{sT2}, s{sT2}, 1\ns_lshr_b32 s{sT2}, s{sT2}, 2")
            e(f"s_mul_i32 s{sT4}, s{sT3}, 5\ns_add_u32 s{sT4}, s{sT4}, 1\ns_lshr_b32 s{sT4}, s{sT4}, 1")
        else:
            e(f"s_and_b32 s{sT2}, s{sT1}, 3\ns_lshr_b32 s{sT3}, s{sT1}, 2")
            e(f"s_and_b32 s{sRB}, s{sT0}, 3\ns_lshl_b32 s{sRB}, s{sRB}, 2\ns_add_u32 s{sRB}, s{sRB}, s{sT2}")
            e(f"s_and_b32 s{sID}, s{sT0}, 4\ns_and_b32 s{sT4}, s{sT3}, 3\ns_add_u32 s{sID}, s{sID}, s{sT4}")
            e(f"s_mul_i32 s{sT2}, s{sT2}, 5\ns_add_u32 s{sT2}, s{sT2}, 1\ns_lshr_b32 s{sT2}, s{sT2}, 1")
            e(f"s_mul_i32 s{sT4}, s{sT3}, 5\ns_add_u32 s{sT4}, s{sT4}, 1\ns_lshr_b32 s{sT4}, s{sT4}, 2")
        if CFG["rot"] == 1:
            e(f"s_add_u32 s{sRHO}, s{sT2}, s{sT4}\ns_cmp_ge_u32 s{sRHO}, 10\ns_cselect_b32 s{sT4}, 10, 0\ns_sub_u32 s{sRHO}, s{sRHO}, s{sT4}")
        elif CFG["rot"] == 2:
            e(f"s_mov_b32 s{sRHO}, s{sT2}")
        elif CFG["rot"] == 4:
            if CFG["map84"]:
                e(f"s_lshr_b32 s{sT2}, s{sT0}, 1")
            else:
                e(f"s_and_b32 s{sT2}, s{sT0}, 4")
            e(f"s_add_u32 s{sRHO}, s{sT2}, s{sT4}\ns_cmp_ge_u32 s{sRHO}, 10\ns_cselect_b32 s{sT4}, 10, 0\ns_sub_u32 s{sRHO}, s{sRHO}, s{sT4}")
        elif CFG["rot"] == 3:
            e(f"s_mov_b32 s{sRHO}, s{sT4}")
        else:
            e(f"s_mov_b32 s{sRHO}, 0")
        e(f"v_lshrrev_b32 v{T}, 3, v{L}\nv_lshrrev_b32 v{T+2}, 4, v{L}\nv_xor_b32 v{T+2}, v{T+1}, v{T+2}")
        e(f"v_mul_u32_u24 v{T+3}, 1280, v{T}\nv_lshl_add_u32 v{vXV}, v{T+2}, 4, v{T+3}")
        e(f"v_xor_b32 v{vXV+1}, 64, v{vXV}\nv_add_u32 v{vXV+2}, {2*9216}, v{vXV}")
        e(f"v_add_u32 v{vXV+3}, {3*9216}, v{vXV+1}\nv_add_u32 v{vXV+1}, 9216, v{vXV+1}")
        e(f"s_lshl_b32 s{sT0}, s{sRB}, 2\ns_add_u32 s{sT0}, s{sT0}, s{sW}\ns_mul_i32 s{sT0}, s{sT0}, {32*1280}")
        e(f"s_mul_i32 s{sT3}, s{sW}, {20*1024}\ns_add_u32 s{sT3}, s{sT3}, {AUX}")

        def seg(i):
            if i == 0:
                e(f"s_mov_b32 s{SEG2}, s{sRHO}")
            else:
                e(f"s_add_u32 s{SEG2+i}, s{SEG2+i-1}, 1\ns_cmp_eq_u32 s{SEG2+i}, 10\ns_cselect_b32 s{SEG2+i}, 0, s{SEG2+i}")
            e(f"s_lshl_b32 s{sT2}, s{SEG2+i}, 7\ns_add_u32 s{XOFF+i}, s{sT0}, s{sT2}")

        seg(0)
        e(f"s_lshl_b32 s{sT1}, s2, 2\ns_add_u32 s{sT1}, s{sT1}, s{sW}\ns_mul_i32 s{sT4}, s{sT1}, {19*128}")
        e(f"v_min_u32 v{T+4}, 18, v{L}\nv_lshlrev_b32 v{T+4}, 7, v{T+4}")
        e(f"s_mov_b32 s{S_X+2}, {2048*1280}\ns_mov_b32 s{S_X+3}, 0x20000\ns_mov_b32 m0, s{sT3}")
        e(f"s_mov_b32 s{S_W+2}, {640*3840}\ns_mov_b32 s{S_W+3}, 0x20000")
        e("s_waitcnt lgkmcnt(0)")
        st(e)
        e(f"s_mov_b32 s{S_X}, s{P_X}\ns_mov_b32 s{S_X+1}, s{P_X+1}")
        self.m0key = ("x", 0)
        for j in range(4):
            self.xdma(e, 0, j)
        tch = CFG.get("touch", 1)
        if tch:
            e(f"s_mov_b32 s{S_W}, s{P_QKV}\ns_mov_b32 s{S_W+1}, s{P_QKV+1}")
            e.vm(f"buffer_load_dword v{T+6}, v{T+4}, s[{S_W}:{S_W+3}], s{sT4} offen", "t1")
        e(f"s_cmp_lt_u32 s{sW}, 2\ns_cselect_b32 s{sGU0}, s{P_G}, s{P_U}\ns_cselect_b32 s{sGU1}, s{P_G+1}, s{P_U+1}")
        if tch:
            e(f"s_and_b32 s{sT1}, s{sW}, 1\ns_lshl_b32 s{sT2}, s2, 1\ns_add_u32 s{sT1}, s{sT1}, s{sT2}\ns_lshl_b32 s{sT1}, s{sT1}, 2")
            e(f"v_and_b32 v{T+4}, 3, v{L}\nv_add_u32 v{T+4}, s{sT1}, v{T+4}\nv_mul_u32_u24 v{T+5}, 2731, v{T+4}\nv_lshrrev_b32 v{T+5}, 13, v{T+5}")
            e(f"v_mul_u32_u24 v{T+5}, {3456-384}, v{T+5}\nv_lshl_add_u32 v{T+4}, v{T+4}, 7, v{T+5}")
            e(f"s_mov_b32 s{S_W}, s{sGU0}\ns_mov_b32 s{S_W+1}, s{sGU1}\ns_mov_b32 s{S_W+2}, {640*3456}")
            e.vm(f"buffer_load_dword v47, v{T+4}, s[{S_W}:{S_W+3}], 0 offen offset:2048", "t1")
        srd(e, S_WS, P_WS, WS_SIZE)
        srd(e, S_DBG, P_DBG, 256)
        e(f"s_mov_b32 s{sSTG}, s{sT3}")
        for i in range(1, 10):
            seg(i)
        if not tch:
            self.xdma_m0(e, 1)
            e("s_nop 0")
            for j in range(4):
                self.xdma(e, 1, j)
        e(f"v_and_b32 v{T}, 31, v{L}\nv_lshrrev_b32 v{T+1}, 5, v{L}")
        e(f"v_bfe_u32 v{T+2}, v{L}, 1, 3\nv_xor_b32 v{T+2}, v{T+2}, v{T+1}")
        e(f"v_lshlrev_b32 v{T}, 7, v{T}\nv_lshl_add_u32 v{T}, v{T+2}, 4, v{T}\nv_add_u32 v{vXR}, s{sSTG}, v{T}")
        for i in range(1, 4):
            e(f"v_xor_b32 v{vXR+i}, {32*i}, v{vXR}")
        e(f"v_mov_b32 v{vONES}, 0x3f803f80\nv_mov_b32 v{vONES+1}, 0x3f803f80")
        e(f"v_lshlrev_b32 v{vL16}, 4, v{L}\nv_lshlrev_b32 v{vL4}, 2, v{L}\nv_mov_b32 v{vONE}, 1")
        e(f"v_cmp_eq_u32 vcc, 0, v0\nv_mov_b32 v{T}, {OOB}\ns_lshl_b32 s{sW4K}, s{sW}, 12\nv_cndmask_b32 v{vSIG}, v{T}, 0, vcc")
        e(f"v_add_u32 v{vL16B}, 4096, v{vL16}")
        e(f"v_lshrrev_b32 v{T}, 3, v{L}\ns_and_b32 s{sT0}, s{sW}, 1\ns_lshl_b32 s{sT0}, s{sT0}, 3\nv_add_u32 v{T}, s{sT0}, v{T}")
        e(f"v_bfe_u32 v{T+1}, v{L}, 4, 1\nv_lshlrev_b32 v{T+1}, 2, v{T+1}\nv_and_b32 v{T+2}, 7, v{L}\nv_xor_b32 v{T+1}, v{T+1}, v{T+2}")
        e(f"v_lshlrev_b32 v{T+1}, 4, v{T+1}")
        e(f"v_mul_u32_u24 v{T+2}, 3456, v{T}\nv_add_u32 v{vWV2}, v{T+2}, v{T+1}")
        for j in range(1, 4):
            e(f"v_add_u32 v{vWV2+j}, {j*(16*3456-1024)}, v{vWV2}")
        if CFG["stamps"]:
            e(f"s_mov_b32 s{sT5}, 0")
        e("s_cmp_ge_u32 s2, 128")
        e("s_cbranch_scc1 L_B")

    def late_setup(self):
        L, T = vLANE, vSC
        t = ""
        t += f"v_and_b32 v{T}, 1, v{L}\nv_lshlrev_b32 v{T}, 4, v{T}\nv_mov_b32 v{T+1}, 0x3f80\nv_lshlrev_b32 v{T}, v{T}, v{T+1}\n"
        t += f"v_bfe_i32 v{T+1}, v{L}, 1, 1\nv_and_b32 v{vID+1}, v{T}, v{T+1}\nv_xor_b32 v{vID}, v{vID+1}, v{T}\n"
        t += f"v_bfe_u32 v{T}, v{L}, 2, 2\nv_lshrrev_b32 v{T+1}, 5, v{L}\nv_lshlrev_b32 v{T+1}, 12, v{T+1}\nv_lshl_add_u32 v{T+1}, v{T}, 7, v{T+1}\n"
        t += f"v_bfe_u32 v{T+2}, v{L}, 3, 1\nv_lshl_add_u32 v{T+1}, v{T+2}, 6, v{T+1}\n"
        t += f"v_bfe_u32 v{T+2}, v{L}, 4, 1\nv_lshl_add_u32 v{T+1}, v{T+2}, 5, v{T+1}\n"
        t += f"v_and_b32 v{T+2}, 3, v{L}\nv_lshl_add_u32 v{vTR}, v{T+2}, 3, v{T+1}\nv_xor_b32 v{vTR+1}, 64, v{vTR}\n"
        t += f"v_add_u32 v{vTR+2}, 0x10000, v{vTR}\nv_add_u32 v{vTR+3}, 0x10000, v{vTR+1}\n"
        t += f"v_and_b32 v{T}, 15, v{L}\nv_lshlrev_b32 v{T}, 4, v{T}\nv_lshrrev_b32 v{T+1}, 5, v{L}\nv_lshl_add_u32 v{T}, v{T+1}, 8, v{T}\n"
        t += f"v_bfe_u32 v{T+1}, v{L}, 4, 1\nv_lshl_add_u32 v{T}, v{T+1}, 10, v{T}\n"
        t += f"s_and_b32 s{sT0}, s{sW}, 1\ns_lshl_b32 s{sT0}, s{sT0}, 11\nv_add_u32 v{vHS}, s{sT0}, v{T}\n"
        t += f"s_lshr_b32 s{sT0}, s{sW}, 1\ns_lshl_b32 s{sT1}, s{sRB}, 1\ns_add_u32 s{sT0}, s{sT0}, s{sT1}\ns_mul_i32 s{sHB}, s{sT0}, {74*4096}\n"
        t += f"s_mov_b32 s{sLN2}, {f32(LN2)}\ns_mov_b32 s{sEPS}, {f32(1e-6/LN2)}\n"
        for i in range(10):
            t += f"s_mul_i32 s{SEG2+i}, s{SEG2+i}, {64*3456}\n"
        t += f"s_lshl_b32 s{sCME}, s{sT0}, 10\ns_add_u32 s{sCME}, s{sCME}, {WS_CNT}\ns_mov_b32 s{sONE}, 1\n"
        t += f"s_and_b32 s{sT0}, s2, 7\ns_lshl_b32 s{sT0}, s{sT0}, 2\ns_lshr_b32 s{sT1}, s2, 6\ns_add_u32 s{sT0}, s{sT0}, s{sT1}\n"
        t += f"s_lshl_b32 s{sCP2}, s{sT0}, 10\ns_add_u32 s{sCP2}, s{sCP2}, {WS_CNT}\n"
        t += f"s_mul_i32 s{sA2}, s{sT0}, 74\ns_add_u32 s{sA2}, s{sA2}, s{sW}\ns_lshl_b32 s{sA2}, s{sA2}, 12\n"
        t += f"s_sub_u32 s{sAO}, s{sA2}, s{sW4K}\ns_add_u32 s{sAO}, s{sAO}, {54*4096}\ns_mul_i32 s{sW5K}, s{sW}, 5120\n"
        t += f"v_add_u32 v{vKTR}, 0x20000, v{vTR}\nv_add_u32 v{vKTR+1}, 0x20000, v{vTR+1}\n"
        t += f"s_bfe_u32 s{sT1}, s2, 0x30003\n"
        t += f"s_mul_i32 s{sB2}, s{sT1}, 74\ns_add_u32 s{sB2}, s{sB2}, s{sW}\ns_mul_i32 s{sB2}, s{sB2}, 5120\ns_add_u32 s{sB2}, s{sB2}, {WS_B2}\n"
        t += f"s_mul_i32 s{sT1}, s{sT1}, 5\ns_lshr_b32 s{sT1}, s{sT1}, 2\ns_lshl_b32 s{sT1}, s{sT1}, 11\n"
        t += f"s_add_u32 s{sCID}, s{sT1}, {WS_CNT + (1024 if self.typ == 'B' else 0)}\n"
        return lines_to_items(t)

    def setup_g1(self, e):
        L, T = vLANE, vSC
        if self.typ == "A":
            e(f"s_lshl_b32 s{sT1}, s{sID}, 1\ns_lshr_b32 s{sT2}, s{sW}, 1\ns_add_u32 s{sT1}, s{sT1}, s{sT2}\ns_add_u32 s{sT2}, s{sID}, 11")
            e(f"s_mov_b32 s{sT0}, 3456\ns_mov_b32 s{S_W+2}, {640*3456}\ns_cmp_lt_u32 s{sID}, 5")
            e(f"s_cselect_b32 s{sT1}, s{sT1}, s{sT2}\ns_cselect_b32 s{sT0}, 3840, s{sT0}\ns_cselect_b32 s{S_W+2}, {640*3840}, s{S_W+2}")
            e(f"s_cselect_b32 s{S_W}, s{P_QKV}, s{sGU0}\ns_cselect_b32 s{S_W+1}, s{P_QKV+1}, s{sGU1}")
        else:
            e(f"s_mul_i32 s{sT1}, s{sID}, 160")
            e(f"s_add_u32 s{S_W}, s{P_QKV}, s{sT1}\ns_addc_u32 s{S_W+1}, s{P_QKV+1}, 0\ns_sub_u32 s{S_W+2}, {640*3840}, s{sT1}")
            for i in range(10):
                e(f"s_mul_i32 s{SEG1+i}, s{SEG2+i}, {64*3840}")
            return
        e(f"s_lshl_b32 s{sT1}, s{sT1}, 7\ns_add_u32 s{S_W}, s{S_W}, s{sT1}\ns_addc_u32 s{S_W+1}, s{S_W+1}, 0\ns_sub_u32 s{S_W+2}, s{S_W+2}, s{sT1}")
        e(f"v_mul_u32_u24 v{T+2}, s{sT0}, v{T}\nv_add_u32 v{vWV1}, v{T+2}, v{T+1}")
        e(f"s_lshl_b32 s{sT1}, s{sT0}, 4\ns_sub_u32 s{sT1}, s{sT1}, 1024")
        for j in range(1, 4):
            e(f"v_add_u32 v{vWV1+j}, s{sT1}, v{vWV1+j-1}")
        e(f"s_lshl_b32 s{sT0}, s{sT0}, 6")
        for i in range(10):
            e(f"s_mul_i32 s{SEG1+i}, s{SEG2+i}, s{sT0}")

    def pack_setup(self):
        L, T = vLANE, vSC
        g = []
        g.append(f"s_lshl_b32 s{sT0}, s{sRB}, 3\ns_add_u32 s{sT0}, s{sT0}, s{sID}\ns_mul_i32 s{sSPIN}, s{sT0}, 43\ns_lshr_b32 s{sSPIN}, s{sSPIN}, 9")
        g.append(f"s_sub_u32 s{sT1}, s{sW}, s{sSPIN}\ns_mul_i32 s{sT1}, s{sT1}, 12\ns_add_u32 s{sT0}, s{sT0}, s{sT1}")
        g.append(f"s_cmp_lt_u32 s{sSPIN}, 10\ns_cselect_b32 s{sT0}, s{sT0}, 100")
        if self.typ == "A":
            g.append(f"s_lshl_b32 s{sT2}, s{sT0}, 1\ns_sub_u32 s{sT1}, s{sT2}, 27\ns_sub_u32 s{sT2}, s{sT2}, 12\ns_cmp_lt_u32 s{sT0}, 14\ns_cselect_b32 s{sT1}, s{sT2}, s{sT1}")
            g.append(f"s_add_u32 s{sT3}, s{sT0}, 32\ns_cmp_lt_u32 s{sT0}, 6\ns_cselect_b32 s{sT1}, s{sT3}, s{sT1}")
            g.append(f"s_sub_u32 s{sT2}, s{sT0}, 22\ns_mov_b32 s{sPKSZ}, {640*1280}\ns_cmp_lt_u32 s{sT0}, 22\ns_cselect_b32 s{sT1}, s{sT1}, s{sT2}\n"
                     f"s_cselect_b32 s{sT3}, s{sT0}, s{sT3}\ns_cselect_b32 s{P_BX}, s{P_D}, s{P_WO}\ns_cselect_b32 s{P_BX+1}, s{P_D+1}, s{P_WO+1}\n"
                     f"s_cselect_b32 s{sPKSZ}, {1728*1280}, s{sPKSZ}")
            nm = 42
        else:
            g.append(f"s_add_u32 s{sT3}, s{sT0}, 22\ns_add_u32 s{sT1}, s{sT0}, 16\ns_cmp_lt_u32 s{sT0}, 16\ns_cselect_b32 s{sT1}, s{sT1}, s{sT3}")
            g.append(f"s_mov_b32 s{P_BX}, s{P_D}\ns_mov_b32 s{P_BX+1}, s{P_D+1}\ns_mov_b32 s{sPKSZ}, {1728*1280}")
            nm = 32
        g.append(f"s_mul_i32 s{sPK0}, s{sT1}, {32*1280}\ns_lshl_b32 s{sT4}, s{sSPIN}, 7\ns_add_u32 s{sPK0}, s{sPK0}, s{sT4}")
        g.append(f"s_mul_i32 s{sT1}, s{sT3}, 5120\ns_add_u32 s{sT1}, s{sT1}, {WS_B2}\ns_cmp_lt_u32 s{sT0}, {nm}\ns_cselect_b32 s{sT1}, s{sT1}, {OOB}")
        g.append(f"s_lshl_b32 s{sT2}, s{sSPIN}, 2")
        for t in range(4):
            x = f"s_add_u32 s{sT2}, s{sT2}, 1\n" if t else ""
            g.append(x + f"s_mul_i32 s{sT3}, s{sT2}, 52\ns_lshr_b32 s{sT3}, s{sT3}, 8\ns_mul_i32 s{sT3}, s{sT3}, {74*5-5}")
            g.append(f"s_add_u32 s{sT3}, s{sT3}, s{sT2}\ns_lshl_b32 s{sT3}, s{sT3}, 10\ns_add_u32 s{OST+t}, s{sT3}, s{sT1}")
        g.append(f"s_add_u32 s{sT4}, s{sW4K}, {144*1024 if self.typ == 'A' else 0}")
        g.append(f"s_lshl_b32 s{sT1}, s{sRB}, 1\ns_and_b32 s{sT2}, s{sW}, 1\ns_add_u32 s{sT1}, s{sT1}, s{sT2}\ns_mul_i32 s{sT1}, s{sT1}, {20*3456}")
        g.append(f"s_lshl_b32 s{sT2}, s{sID}, 7\ns_add_u32 s{sQ1}, s{sT1}, s{sT2}")
        g.append(f"s_lshl_b32 s{sCPK}, s{sSPIN}, 1\ns_lshr_b32 s{sT1}, s{sW}, 1\ns_add_u32 s{sCPK}, s{sCPK}, s{sT1}")
        g.append(f"s_lshl_b32 s{sCPK}, s{sCPK}, 10\ns_add_u32 s{sCPK}, s{sCPK}, {WS_CNT}")
        return [(x, x.count("\n") + 1) for x in g]

    def touch_item(self, srdreg, vaddr, vdst, at):
        L = vLANE
        t = f"v_and_b32 v{vaddr}, 31, v{L}\nv_min_u32 v{vaddr}, 19, v{vaddr}\nv_mul_u32_u24 v{vaddr}, 3456, v{vaddr}\n"
        if self.typ == "A":
            t += f"v_lshrrev_b32 v{vdst}, 5, v{L}\nv_mul_u32_u24 v{vdst}, {19*128}, v{vdst}\nv_add_u32 v{vaddr}, v{vaddr}, v{vdst}\n"
        t += f"s_mov_b32 s{srdreg}, s{sGU0}\ns_mov_b32 s{srdreg+1}, s{sGU1}\ns_mov_b32 s{srdreg+2}, {640*3456}"
        w = 5.0 if self.typ == "A" else 2.5
        m = M(None, lambda e: e.vm(f"buffer_load_dword v{vdst}, v{vaddr}, s[{srdreg}:{srdreg+3}], s{sQ1} offen offset:{0 if self.typ == 'A' else 1024}",
                                   "t2", w=w), -21, at, True)
        m.w = w
        return lines_to_items(t), m

    def pack_events(self, e, add, pf, PD, u0, u1, prio, ready):
        for i in range(4):
            pf.append(M(lambda e: self.set_m0(e, "pk", f"s_mov_b32 m0, s{sT4}"),
                        lambda e, i=i: e.vm(f"buffer_load_dwordx4 v{vXV+i}, s[{S_X}:{S_X+3}], s{sPK0} offen offset:{i*1024} lds", "pk", w=0.8),
                        -20 + i / 10, u0, prio))
            pf[-1].w = 0.8

        def wpk(e):
            assert e.issued.get("pk") == 4 and ready()
            e.wait(vm="pk")
        add(u1, 0, wpk, 1)
        for t in range(4):
            for rd in range(2):
                add(u1 + (t >> 1), 1 + (t & 1), lambda e, t=t, rd=rd: e.lg(
                    f"ds_read_b64_tr_b16 {a(PD+4*t+2*rd,2)}, v{vPA+(t^(2*rd))} offset:{rd*1024}", ("pkr", t)))

            def stf(e, t=t):
                assert e.issued.get(("pkr", t)) == 2 and not e.wait(lg=("pkr", t))
                e.vm(f"buffer_store_dwordx4 {a(PD+4*t,4)}, v{vL16}, {WS}, s{OST+t} offen sc1", "pks")
            pf.append(M(None, stf, -10 + t / 10, u1 + (t >> 1) + 2, True))

    def pack_setup_v(self):
        L, T = vLANE, vT
        P = vPA
        return lines_to_items(
            f"v_bfe_u32 v{T}, v{L}, 2, 3\nv_lshrrev_b32 v{T+1}, 1, v{T}\nv_bfe_u32 v{P}, v{L}, 1, 1\nv_xor_b32 v{T+1}, v{T+1}, v{P}\n"
            f"v_lshrrev_b32 v{P}, 5, v{L}\nv_lshl_add_u32 v{T}, v{P}, 4, v{T}\nv_lshlrev_b32 v{T}, 7, v{T}\nv_lshl_add_u32 v{T}, v{T+1}, 4, v{T}\n"
            f"v_and_b32 v{T+1}, 1, v{L}\nv_lshl_add_u32 v{T}, v{T+1}, 3, v{T}\nv_add_u32 v{P}, s{sT4}, v{T}\n"
            + "\n".join(f"v_xor_b32 v{P+i}, {32*i}, v{P}" for i in range(1, 4)))

    def setup_B(self, e):
        L, T = vLANE, vSC
        e(f"s_lshl_b32 s{sT0}, s{sID}, 3\ns_add_u32 s{sT0}, s{sT0}, s{sRB}")
        e(f"s_lshr_b32 s{sT1}, s{sRB}, 3\ns_or_b32 s{sT1}, s{sT1}, s{sW}")
        e(f"s_lshl_b32 s{sT2}, s{sT0}, 10\ns_add_u32 s{sT2}, s{sT2}, {WS_KV}")
        e(f"s_lshl_b32 s{sT4}, s{sT0}, 9\ns_add_u32 s{sT4}, s{sT4}, {WS_CNT}\ns_lshl_b32 s{sINI}, s{sT0}, 2\nv_lshlrev_b32 v60, 3, v{L}")
        e(f"s_cmp_eq_u32 s{sT1}, 0")
        e(f"s_cselect_b32 s{sT2}, s{sT2}, {OOB}\ns_cselect_b32 s{sT4}, s{sT4}, {OOB}\ns_cselect_b32 s{sINI}, s{sINI}, {OOB}")
        Z = 56
        for i in range(4):
            e(f"v_mov_b32 v{Z+i}, 0")
        e.vm(f"buffer_store_dwordx4 v[{Z}:{Z+3}], v{vL16}, {WS}, s{sT2} offen sc1", "init")
        e.vm(f"buffer_store_dwordx2 v[{Z}:{Z+1}], v60, {WS}, s{sT4} offen sc1", "init")

    def setup_B2(self):
        L, T = vLANE, vSC
        g = [f"s_mul_i32 s{sT0}, s{sW}, {16*3840}\ns_add_u32 s{sT0}, s{sT0}, 1280\nv_mov_b32 v{T+4}, {1280-32}\nv_mov_b32 v{T+5}, {1280-192}"]
        for i in range(5):
            g.append(f"v_add_u32 v{T}, {64*i}, v{L}\nv_mul_u32_u24 v{T+1}, 3277, v{T}\nv_lshrrev_b32 v{T+1}, 16, v{T+1}\n"
                     f"v_mul_u32_u24 v{T+2}, 20, v{T+1}\nv_sub_u32 v{T+2}, v{T}, v{T+2}")
            g.append(f"v_cmp_lt_u32 vcc, 9, v{T+2}\nv_mul_u32_u24 v{T+1}, 3840, v{T+1}\nv_lshl_add_u32 v{T+1}, v{T+2}, 4, v{T+1}\n"
                     f"v_cndmask_b32 v{T+3}, 0, v{T+4}, vcc")
            x = f"v_subrev_u32 v{T+1}, {1024*i}, v{T+1}" if 0 < i < 4 else "s_nop 0"
            g.append(f"v_cmp_lt_u32 vcc, 11, v{T+2}\n{x}\ns_nop 0\nv_cndmask_b32 v{T+3}, v{T+3}, v{T+5}, vcc\n"
                     f"v_add3_u32 v{vWV1+i}, v{T+1}, v{T+3}, s{sT0}")
        return [(x, x.count("\n") + 1) for x in g]

    def ktr_items(self):
        L, T = vLANE, vSC
        return lines_to_items(
            f"v_bfe_u32 v{T}, v{L}, 2, 2\nv_lshrrev_b32 v{T+1}, 5, v{L}\nv_lshl_add_u32 v{T}, v{T+1}, 3, v{T}\nv_mul_u32_u24 v{T}, 320, v{T}\n"
            f"v_bfe_u32 v{T+1}, v{L}, 4, 1\nv_lshl_add_u32 v{T}, v{T+1}, 5, v{T}\nv_and_b32 v{T+1}, 3, v{L}\nv_lshl_add_u32 v{KTR[0]}, v{T+1}, 3, v{T}\n"
            f"v_add_u32 v{KTR[1]}, {60*1024}, v{KTR[0]}\nv_add_u32 v{KTR[2]}, {120*1024}, v{KTR[0]}")

    def xloop(self, e, st, setup, npre, after=()):
        B = self.typ == "B"
        L = vLANE
        S0, S1, Q0, Q1 = vS, vS + 4, vT, vT + 4

        def take(n):
            while setup and n > 0:
                it = setup.pop(0)
                run_item(e, it)
                n -= it[1]

        take(npre)
        st(e)
        def xg(i):
            return [(lambda e, i=i: self.xdma_m0(e, i), lambda e, i=i, j=j: self.xdma(e, i, j)) for j in range(4)]

        def wg(n):
            k = 5 if B else 4
            return [(lambda e, V=V: self.q_dma_pre(e, V), lambda e, V=V: self.q_dma(e, V)) for V in range(k * n, k * n + k)]

        nwe = CFG.get("nweB", 0) if B else CFG.get("nwe", 0)
        nwt = CFG.get("nwtB", 2) if B else CFG.get("nwt", 4)
        self.nwt = nwt
        order = [("x", 1)] * CFG.get("touch", 1) + [("x", 2)] + [("w", n) for n in range(nwe)] + [("x", i) for i in range(3, 10)] + [("w", n) for n in range(nwe, nwt)]
        sched = {i: [] for i in range(-1, 10)}
        it = -1
        for kind, n in order:
            if kind == "x":
                it = max(it, n - 4)
            sched[it].append(xg(n) if kind == "x" else wg(n))
            if kind == "w" and n >= nwe:
                it = min(it + 1, 9)
            elif kind == "x" and n == 9:
                it = min(it + CFG.get("wdel", 1), 9)
        for g_ in sched[-1]:
            for pre, go in g_:
                if pre(e):
                    e("s_nop 0")
                go(e)

        def sm(i, j, kind):
            first = i == 0 and j < 2
            src = a(16 * i + 2 * j, 2)
            if kind == 0:
                d = v((S0, S1)[j & 1], 4)
                return f"v_mfma_f32_4x4x4_16b_bf16 {d}, {v(vONES,2)}, {src}, {'0' if first else d}"
            d = v((Q0, Q1)[j & 1], 4)
            return f"v_mfma_f32_4x4x4_16b_bf16 {d}, {src}, {src}, {'0' if first else d}"

        for i in range(10):
            e.wait(vm=("x", i), lg=("xr", i - 1))
            if i == 0:
                st(e)
            for j in range(4):
                e.lg(f"ds_read_b128 {a(16*i+4*j,4)}, v{vXR+j} offset:{(i%5)*4096}", ("xr", i))
            if B and i == 2:
                assert not e.pending_vm("init")
                e.vm(f"buffer_store_dword v{vONE}, v{vSIG}, s[{S_DBG}:{S_DBG+3}], s{sINI} offen sc1", "initf")
            if i == 6:
                setup.extend(after)
            dl = [x for g_ in sched[i] for x in g_]
            for k in range(max(4, len(dl))):
                n = dl[k][0](e) if k < len(dl) else 0
                if i > 0 and k < 4:
                    for j in (2 * k, 2 * k + 1):
                        e(sm(i - 1, j, 0))
                        e(sm(i - 1, j, 1))
                elif n:
                    e("s_nop 0")
                if k < len(dl):
                    dl[k][1](e)
                take(CFG.get("ntake", 4))
        take(1000)
        e(f"s_mov_b32 s{S_X}, s{P_BX}\ns_mov_b32 s{S_X+1}, s{P_BX+1}\ns_mov_b32 s{S_X+2}, s{sPKSZ}")
        e.wait(lg=("xr", 9))
        st(e)
        for j in range(8):
            e(sm(9, j, 0))
            if j < 4:
                e(sm(9, j, 1))
            else:
                e("s_nop 0")
        for j in range(4, 8):
            e(sm(9, j, 1))
            e("s_nop 0")
        e(f"v_add_f32 v{S0}, v{S0}, v{S1}\nv_mov_b32 v{S1}, v{S0}\ns_nop 1\nv_permlane32_swap_b32 v{S0}, v{S1}")
        e(f"v_add_f32 v{S0}, v{S0}, v{S1}\nv_mul_f32 v{vMEAN}, {f32(-1/640)}, v{S0}")
        e(f"v_cvt_pk_bf16_f32 v{S1}, v{vMEAN}, v{vMEAN}")
        for i in range(4):
            e(f"v_and_b32 v{vNM+i}, 0xffff0000, v{S1}")
        e("s_nop 1")
        self.center_mfma(e, 0)

    def var_items(self):
        L, Q0, Q1 = vLANE, vT, vT + 4
        t = ""
        for i in range(4):
            t += f"v_add_f32 v{Q0+i}, v{Q0+i}, v{Q1+i}\n"
        t += f"v_bfe_i32 v{Q1}, v{L}, 0, 1\nv_bfe_i32 v{Q1+1}, v{L}, 1, 1\n"
        t += f"v_bfi_b32 v{Q0}, v{Q1}, v{Q0+1}, v{Q0}\nv_bfi_b32 v{Q0+2}, v{Q1}, v{Q0+3}, v{Q0+2}\nv_bfi_b32 v{Q0}, v{Q1+1}, v{Q0+2}, v{Q0}\n"
        t += f"v_mov_b32 v{Q1}, v{Q0}\nv_mul_f32 v{vMEAN}, v{vMEAN}, v{vMEAN}\ns_nop 0\n"
        t += f"v_permlane32_swap_b32 v{Q0}, v{Q1}\nv_add_f32 v{Q0}, v{Q0}, v{Q1}\nv_mul_f32 v{Q0}, {f32(1/640)}, v{Q0}\n"
        t += f"v_sub_f32 v{Q0}, v{Q0}, v{vMEAN}\nv_max_f32 v{Q0}, 0, v{Q0}\n"
        t += f"v_cvt_pk_bf16_f32 v{Q0}, v{Q0}, v{Q0}\nv_and_b32 v{Q0}, 0xffff0000, v{Q0}\nv_add_f32 v{Q0}, {f32(1e-5)}, v{Q0}\n"
        t += f"v_cvt_pk_bf16_f32 v{Q0}, v{Q0}, v{Q0}\nv_and_b32 v{Q0}, 0xffff0000, v{Q0}\nv_sqrt_f32 v{Q0}, v{Q0}\ns_nop 0\n"
        t += f"v_cvt_pk_bf16_f32 v{Q0}, v{Q0}, v{Q0}\nv_and_b32 v{Q0}, 0xffff0000, v{Q0}\nv_rcp_f32 v{vR}, v{Q0}\nv_mul_f32 v{vC}, v{Q0}, v{Q0}\n"
        t += f"v_mul_f32 v{vK2}, {f32(LOG2E)}, v{vR}\nv_mul_f32 v{vK1}, {f32(-LOG2E)}, v{vR}\n"
        return lines_to_items(t)

    def center_mfma(self, e, S):
        for j in range(8):
            e(f"v_mfma_f32_4x4x4_16b_bf16 {v(vCT+4*j,4)}, {v(vID,2)}, {a(16*S+2*j,2)}, {v(vNM,4)}")

    def center_valu(self, S):
        q, pend = [], []
        for j in range(16):
            src = vCT + 2 * j
            if S in ARCH:
                q.append((f"v_cvt_pk_bf16_f32 v{AARCH+16*ARCH.index(S)+j}, v{src}, v{src+1}", 1))
            else:
                q.append((f"v_cvt_pk_bf16_f32 v{src}, v{src}, v{src+1}", 1))
                pend.append((f"v_accvgpr_write_b32 a{16*S+j}, v{src}", 1))
                if len(pend) > 1:
                    q.append(pend.pop(0))
        return q + pend

    def q_base(self, U):
        return ((U >> 2) % 10) * 16384 if self.typ == "A" else AUX + ((U >> 2) % 5) * 16384

    def iskv(self, V):
        return self.typ == "B" and V < 50

    def w_need(self, V):
        return V if self.typ == "A" else 4 * (V // 5) if V < 50 else V - 10

    def w_ok(self, V, free):
        if V >= self.NW or V > self.wlimit:
            return False
        if self.typ == "A":
            return V <= free + 40
        if V < 50:
            return V < 40 or free >= 4 * (V // 5 - 6) + 3
        U = V - 10
        if U < 60:
            return free >= 4 * ((95 + 16 * ((U - 40) >> 2)) // 20) + 3
        return U <= free + 20

    def w_weight(self, V):
        return 1.6 if self.iskv(V) else 1.0

    def q_dma_pre(self, e, V):
        n = 0
        if self.iskv(V):
            S, i = divmod(V, 5)
            return self.set_m0(e, ("kv", S, i >> 2), f"s_add_u32 m0, s{sW5K}, {self.kv_base(S) + (i>>2)*4096}")
        U = self.w_need(V)
        if U % 40 == 0 and U > 0 and self.srd_done != U:
            e(f"s_add_u32 s{sT0}, s{sID}, {8 if self.typ == 'B' else 0 if U == 40 else 19}\ns_lshl_b32 s{sT0}, s{sT0}, 7")
            e(f"s_add_u32 s{S_W}, s{sGU0}, s{sT0}\ns_addc_u32 s{S_W+1}, s{sGU1}, 0\ns_sub_u32 s{S_W+2}, {640*3456}, s{sT0}")
            self.srd_done = U
            n += 5
        n += self.set_m0(e, ("q", U >> 2), f"s_add_u32 m0, s{sW4K}, {self.q_base(U)}")
        return n

    def q_dma(self, e, V):
        if self.iskv(V):
            S, i = divmod(V, 5)
            assert self.m0key == ("kv", S, i >> 2)
            e.vm(f"buffer_load_dwordx4 v{vWV1+i}, s[{S_W}:{S_W+3}], s{SEG1+S} offen offset:{(i&3)*1024} lds", ("w", S), w=1.6)
            return
        U = self.w_need(V)
        assert self.m0key == ("q", U >> 2)
        first = U < 40
        wv = (vWV1 if first else vWV2) + (U & 3)
        seg = (SEG1 if first else SEG2) + (U % 40) // 4
        e.vm(f"buffer_load_dwordx4 v{wv}, s[{S_W}:{S_W+3}], s{seg} offen offset:{(U&3)*1024} lds", ("w", U >> 2))

    def frag(self, U, t):
        return FR + self.fs * (U % 3) + 4 * t

    def reads(self, U):
        if self.typ == "B" and U < 40:
            return [lambda e, t=t, rd=rd: self.kv_read(e, U, t, rd) for t in range(5) for rd in range(2)]
        return [lambda e, t=t, rd=rd: self.q_read(e, U, t, rd) for t in range(4) for rd in range(2)]

    def q_read(self, e, U, t, rd):
        mat, th = t & 1, t >> 1
        off = self.q_base(U) + mat * 8192 + (U & 3) * 1024 + rd * 512
        win = off >> 16
        e.lg(f"ds_read_b64_tr_b16 {a(self.frag(U,t)+2*rd,2)}, v{TRW[win]+th} offset:{off & 0xffff}", ("r", U))

    def kv_base(self, S):
        return (S if S < 8 else S - 6) * 20480

    def kv_read(self, e, U, t, rd):
        u = U
        off = self.kv_base(u >> 2) + (u & 3) * 5120 + rd * 1280 + t * 64
        win = off // (60 * 1024)
        e.lg(f"ds_read_b64_tr_b16 {a(self.frag(U,t)+2*rd,2)}, v{KTR[win]} offset:{off - win*60*1024}", ("r", U))

    def soff_pre(self, reg, isa, i, mul, keyname):
        def pre(e):
            if getattr(self, keyname, None) == i:
                return 0
            setattr(self, keyname, i)
            if not CFG.get("rot2", 0):
                e(f"s_add_u32 s{reg}, s{sA2 if isa else sB2}, {pos0(i)*mul}")
                if i == 3:
                    e(f"s_cmp_lt_u32 s{sW}, 2\ns_cselect_b32 s{reg}, s{reg}, {OOB}")
                    return 3
                return 1
            if i < 4:
                r = (RA4 if isa else RB4)[i]
                e(f"s_cmp_lt_u32 s{r}, s{sLA if isa else sLB}\ns_cselect_b32 s{reg}, s{r}, {OOB}")
                return 2
            if i < 6:
                r, c = (RA2 if isa else RB2)[i - 4], 14
            elif i < 14:
                r, c = (RA4 if isa else RB4)[(i - 6) & 3], pos0(i - ((i - 6) & 3))
            else:
                r, c = RB5[i - 14], 54
            e(f"s_add_u32 s{reg}, s{r}, {c*mul}")
            return 1
        return pre

    def rot_items(self):
        if not CFG.get("rot2", 0):
            return []
        x, y = sa, sb
        t = f"s_bfe_u32 s{x}, s2, 0x30003\ns_lshr_b32 s{y}, s2, 6\ns_add_u32 s{x}, s{x}, s{y}\n"
        if not CFG.get("rot2", 1):
            t += f"s_mov_b32 s{x}, 0\n"
        for k in range(4):
            t += f"s_add_u32 s{y}, s{x}, {k}\ns_and_b32 s{y}, s{y}, 3\n"
            t += f"s_lshl_b32 s{RA4[k]}, s{y}, 14\ns_add_u32 s{RA4[k]}, s{RA4[k]}, s{sA2}\n"
            t += f"s_mul_i32 s{RB4[k]}, s{y}, 20480\ns_add_u32 s{RB4[k]}, s{RB4[k]}, s{sB2}\n"
            if k < 2:
                t += f"s_and_b32 s{y}, s{y}, 1\ns_lshl_b32 s{RA2[k]}, s{y}, 14\ns_add_u32 s{RA2[k]}, s{RA2[k]}, s{sA2}\n"
                t += f"s_mul_i32 s{RB2[k]}, s{y}, 20480\ns_add_u32 s{RB2[k]}, s{RB2[k]}, s{sB2}\n"
        for k in range(5):
            t += f"s_add_u32 s{y}, s{x}, {k}\ns_mul_i32 s{sLA}, s{y}, 52\ns_lshr_b32 s{sLA}, s{sLA}, 8\ns_mul_i32 s{sLA}, s{sLA}, 5\ns_sub_u32 s{y}, s{y}, s{sLA}\n"
            t += f"s_lshl_b32 s{RA5[k]}, s{y}, 14\ns_add_u32 s{RA5[k]}, s{RA5[k]}, s{sAO}\n"
            t += f"s_mul_i32 s{RB5[k]}, s{y}, 20480\ns_add_u32 s{RB5[k]}, s{RB5[k]}, s{sB2}\n"
        t += f"s_sub_u32 s{sLA}, s{sAO}, {40*4096}\ns_sub_u32 s{sLB}, s{sB2}, s{sW5K}\ns_add_u32 s{sLB}, s{sLB}, {14*5120}\n"
        return lines_to_items(t)

    def p2_items(self):
        its = []
        for i in range(19):
            spre = self.soff_pre(sb, False, i, 5120, "sbkey")
            for j in range(5):
                vo = vL16 if j < 4 else vL16B
                if i >= 14:
                    def pre(e, i=i, j=j, spre=spre):
                        n = spre(e)
                        return n + self.set_m0(e, ("h2", i, j >> 2), f"s_add_u32 m0, s{sW5K}, {(i-14)*20480 + (j>>2)*4096}")

                    def go(e, i=i, j=j, vo=vo):
                        assert self.m0key == ("h2", i, j >> 2) and self.sbkey == i
                        e.vm(f"buffer_load_dwordx4 v{vo}, {WS}, s{sb} offen offset:{(j&3)*1024} sc1 lds", "BO")
                    its.append(M(pre, go, 3.0 + (i - 14) / 10 + j / 100, INF, cls=("BO", i - 14)))
                else:
                    def go(e, i=i, j=j, vo=vo):
                        assert self.sbkey == i
                        e.vm(f"buffer_load_dwordx4 {self.alloc(('B', i, j))}, v{vo}, {WS}, s{sb} offen offset:{(j&3)*1024} sc1", ("B", i))
                    its.append(M(spre, go, (slot_time(i) - 0.6 if i < 10 else 14.4 + (i - 10) / 4) + j / 100, INF, key=("B", i, j), cls="B1" if i < 6 else "B2"))
        for i in range(14):
            spre = self.soff_pre(sa, True, i, 4096, "sakey")
            for k, tt in enumerate(TT):
                def go(e, i=i, tt=tt):
                    assert self.sakey == i
                    e.vm(f"buffer_load_dwordx4 {self.alloc(('A', i, tt))}, v{vAV+tt}, {WS}, s{sa} offen sc1", ("A", i, tt))
                its.append(M(spre, go, slot_time(i) + k / 4 if i < 10 else 15 + k + (i - 10) / 4, INF, key=("A", i, tt),
                             cls="E1" if i < 4 else "E2" if i < 6 else "BH" if i < 10 else "L"))
        for k in range(20):
            def pre(e, k=k):
                if self.sakey == ("o", k):
                    return 0
                self.sakey = ("o", k)
                e(f"s_add_u32 s{sa}, s{RA5[k>>2]}, {(k&3)*4096}" if CFG.get("rot2", 0) else f"s_add_u32 s{sa}, s{sAO}, {k*4096}")
                return 1

            def go(e, k=k):
                assert self.sakey == ("o", k)
                e.vm(f"buffer_load_dwordx4 {self.alloc(('AO', k))}, v{vAV}, {WS}, s{sa} offen sc1", ("AO", k))
            its.append(M(pre, go, 6 + k / 4, INF, key=("AO", k), cls="O"))
        return its

    def av_items(self):
        t = ""
        for i in range(4):
            t += f"s_add_u32 s{sT3}, s{sW}, {i}\ns_and_b32 s{sT3}, s{sT3}, 3\ns_lshl_b32 s{sT3}, s{sT3}, 10\nv_add_u32 v{vAV+i}, s{sT3}, v{vL16}\n"
        return lines_to_items(t)

    def quad(self, e, gi, acc, q, ev, NV, pf=None, center=False, q2=None, qstart=1, endbar=None, budget=lambda u: 5, release=False):
        pf = pf if pf is not None else []
        q2 = q2 if q2 is not None else []
        nt = len(acc)
        armed = None
        for u in range(40):
            U = 40 * gi + u
            rds = self.reads(U + 2) if U + 2 < NV else []
            for t in range(nt):
                C = acc[t]
                ops = (a(self.frag(U, t), 4), Areg(u)) if nt == 4 else (Areg(u), a(self.frag(U, t), 4))
                e(f"v_mfma_f32_32x32x16_bf16 {C}, {ops[0]}, {ops[1]}, {'0' if u == 0 else C}")
                b = budget(u)
                for _ in range(-(-len(rds) // (nt - t))):
                    rds.pop(0)(e)
                    b -= 1
                if armed == "w":
                    self.q_dma(e, self.dma_next)
                    self.dma_next += 1
                    b -= 1
                elif armed == "p":
                    pf.pop(0).go(e)
                    b -= 1
                armed = None
                for fn, cost in ev.get((u, t), []):
                    fn(e)
                    b -= cost
                last = t == nt - 1
                bar = last and (U & 3) == 1 and U + 3 < NV
                xbar = last and endbar is not None and u in endbar
                if last:
                    b -= 2 if (bar or xbar) else 1
                cbatch = center and t == 0 and (u & 3) == 1 and u < 36
                dt = 33.5 + (75 if cbatch else 0)
                tmp = Emit()
                un, tn = (u, t + 1) if not last else (u + 1, 0)
                nextbar = tn == nt - 1 and (U & 3) == 1 and U + 3 < NV
                free = (U + 1) if bar else self.free_upto
                wok = self.w_ok(self.dma_next, free)
                crit = wok and self.w_need(self.dma_next) - U < CFG.get("minlook", 9)
                if un < 40 and not nextbar:
                    pok = self.pick(pf, un)
                    if pok and not crit and (pf[0].prio or not wok):
                        if e.can(dt, pf[0].w):
                            b -= pf[0].pre(tmp)
                            armed = "p"
                    elif wok and (crit or e.can(dt, self.w_weight(self.dma_next))):
                        b -= self.q_dma_pre(tmp, self.dma_next)
                        armed = "w"
                if u * 4 + t >= qstart:
                    had = bool(q)
                    b = fill(e, q, b)
                    if had and not q:
                        self.qdone = u
                    if not q:
                        fill(e, q2, b, False)
                if center and t == 2:
                    dst = regs(Areg(min(u + 1, 39)))
                    while any(Ins(it[0]).wr & dst for it in q):
                        run_item(e, q.pop(0))
                        self.over += 1
                e.lines += tmp.lines
                e.tick(dt)
                if cbatch:
                    self.over += len(q)
                    drain(e, q)
                    self.center_mfma(e, u // 4 + 1)
                if center and t == 1 and (u & 3) == 1 and u < 36:
                    q += self.center_valu(u // 4 + 1)
                if last:
                    tags = []
                    if bar:
                        tags = [("w", (U + 3) >> 2)]
                        assert e.issued.get(tags[0]) == (5 if self.typ == "B" and U + 3 < 40 else 4), tags
                    assert bar or xbar or ("barwait", u) not in ev
                    tags += ev.get(("barwait", u), [])
                    if ("barchk", u) in ev:
                        ev[("barchk", u)]()
                    if ("barpoll", u) in ev:
                        assert bar or xbar
                        ev[("barpoll", u)].check(e, vm=tags if tags else None)
                    else:
                        e.wait(vm=tags if tags else None, lg=[("r", U + 1)] + ev.get(("barlg", u), []))
                    if release and (u >> 2) < 8:
                        self.pool.append(Areg(u))
                    if bar or xbar:
                        e("s_barrier")
                        self.free_upto = U + 1
                        self.look.append(self.w_need(self.dma_next) - U)
                        if CFG.get("fine"):
                            self.st(e)
        assert not armed

    def quad_start(self, e, U0):
        e.wait(vm=("w", U0 >> 2), lg="all")
        e("s_barrier")
        for U in (U0, U0 + 1):
            for fn in self.reads(U):
                fn(e)

    def hoff_items(self, mul, add, stride):
        return lines_to_items(f"s_lshl_b32 s{sT1}, s{sID}, {12 + (mul - 1)}\ns_add_u32 s{sT1}, s{sT1}, s{sHB}\n"
                              f"s_add_u32 s{sT1}, s{sT1}, {(add*4096) & 0xffffffff}\ns_add_u32 s{sT2}, s{sT1}, {stride*4096}")

    def hstore(self, G, c, th):
        return (lambda e: e.vm(f"buffer_store_dwordx4 {v(G+8*c,4)}, v{vHS}, {WS}, s{(sT1,sT2)[th]} offen offset:{c*512} sc1", ("h", th)), 1, "mem")

    def epi_gu(self, acc, mul, add, stride):
        q = self.hoff_items(mul, add, stride)
        for th in range(2):
            G, U_ = acc + 32 * th, acc + 32 * th + 16
            stages = []
            for r in range(16):
                g, u_ = G + r, U_ + r
                stages.append([
                    (f"v_mul_f32 v{u_}, v{g}, v{u_}", 1),
                    (f"v_mul_f32 v{g}, v{vK1}, v{g}", 1),
                    (f"v_exp_f32 v{g}, v{g}", 2),
                    (f"v_fma_f32 v{g}, v{g}, v{vC}, v{vC}", 1),
                    (f"v_rcp_f32 v{g}, v{g}", 2),
                    (f"v_mul_f32 v{u_}, v{u_}, v{g}", 1),
                ])
            for i in range(16 + 4):
                for k, off in ((0, 0), (4, 2), (1, 0), (3, 1), (2, 0), (5, 3)):
                    r = i - off
                    if 0 <= r < 16:
                        q.append(stages[r][k])
                r = i - 4
                if r >= 0 and r & 1:
                    c = r >> 3
                    q.append((f"v_cvt_pk_bf16_f32 v{G+8*c+((r&7)>>1)}, v{U_+r-1}, v{U_+r}", 1))
                    if r == 15:
                        q.append((lambda e, G=G, th=th: self.stq.extend(
                            M(None, self.hstore(G, c_, th)[0], -50 + th + c_ / 10, self.st_at(th), True) for c_ in range(2)), 0))
        return q

    def epi_gu_pk(self, acc, mul, add, stride):
        assert vC == vK1 + 1 and vK1 % 2 == 0
        KC = v(vK1, 2)
        chunks = []
        for th in range(2):
            G, U_ = acc + 32 * th, acc + 32 * th + 16
            for c in range(2):
                q = []
                rs = range(8 * c, 8 * c + 8, 2)
                for r in rs:
                    q.append((f"v_pk_mul_f32 {v(U_+r,2)}, {v(G+r,2)}, {v(U_+r,2)}", 1))
                    q.append((f"v_pk_mul_f32 {v(G+r,2)}, {v(G+r,2)}, {KC} op_sel_hi:[1,0]", 1))
                for r in range(8 * c, 8 * c + 8):
                    q.append((f"v_exp_f32 v{G+r}, v{G+r}", 2))
                for r in rs:
                    q.append((f"v_pk_fma_f32 {v(G+r,2)}, {v(G+r,2)}, {KC}, {KC} op_sel:[0,1,1] op_sel_hi:[1,1,1]", 1))
                for r in range(8 * c, 8 * c + 8):
                    q.append((f"v_rcp_f32 v{G+r}, v{G+r}", 2))
                for r in rs:
                    q.append((f"v_pk_mul_f32 {v(U_+r,2)}, {v(U_+r,2)}, {v(G+r,2)}", 1))
                for r in rs:
                    q.append((f"v_cvt_pk_bf16_f32 v{G+8*c+((r&7)>>1)}, v{U_+r}, v{U_+r+1}", 1))
                if CFG.get("tst", 2) == 1:
                    q.append(self.hstore(G, c, th))
                elif CFG.get("tst", 2) == 2 and c == 1:
                    q += [self.hstore(G, 0, th), self.hstore(G, 1, th)]
                elif CFG.get("tst", 2) == 4 and c == 1 and th == 1:
                    q += [self.hstore(acc + 32 * t_, c_, t_) for t_ in range(2) for c_ in range(2)]
                chunks.append(q)
        chunks[0] = self.hoff_items(mul, add, stride) + chunks[0]
        return chunks

    def phi_items(self, src, kreg, dst, ntmp=6):
        T = vT
        q = []
        for i in range(16 + 3):
            r = i
            if r < 16:
                q.append((f"v_mul_f32 v{src+r}, v{kreg(r)}, v{src+r}", 1))
            r = i - 2
            if 0 <= r < 16:
                q.append((f"v_fmac_f32 v{T+r%ntmp}, s{sLN2}, v{src+r}", 1))
            r = i - 3
            if 0 <= r < 16 and r & 1:
                q.append((f"v_cvt_pk_bf16_f32 v{dst+(r>>1)}, v{T+(r-1)%ntmp}, v{T+r%ntmp}", 1))
                if (r & 7) == 7:
                    q.append((None, r >> 3))
            r = i
            if r < 16:
                q.append((f"v_exp_f32_e64 v{T+r%ntmp}, v{src+r} clamp", 2))
            r = i - 1
            if 0 <= r < 16:
                q.append((f"v_max_f32 v{src+r}, s{sEPS}, v{src+r}", 1))
        return q

    def epi_q(self, acc):
        q = lines_to_items(f"s_lshl_b32 s{sT1}, s{sRB}, 2\ns_add_u32 s{sT1}, s{sT1}, s{sW}\ns_mul_i32 s{sT1}, s{sT1}, 5\ns_add_u32 s{sT1}, s{sT1}, s{sID}\n"
                           f"s_lshl_b32 s{sT1}, s{sT1}, 13\ns_add_u32 s{sT1}, s{sT1}, {WS_PQ}\ns_add_u32 s{sT2}, s{sT1}, 4096")
        for t in range(4):
            mat, th = t & 1, t >> 1
            src = acc + 16 * t
            for it in self.phi_items(src, lambda r: vK2, src):
                if it[0] is not None:
                    q.append(it)
            if mat == 1:
                def both(e, c, th):
                    for m_ in range(2):
                        e.vm(f"buffer_store_dwordx4 {v(acc+32*th+16*m_+4*c,4)}, v{vL16}, {WS}, s{(sT1,sT2)[m_]} offen offset:{(2*th+c)*1024} sc1",
                             ("h", th) if m_ == 0 else ("h", 9))
                q.append((lambda e, th=th: self.stq.extend(
                    M(None, lambda e, c_=c_: both(e, c_, th), -50 + th + c_ / 10, self.st_at(th), True) for c_ in range(2)), 0))
        return q

    def mix(self, e, q, mem):
        for n_, it in enumerate(q):
            soon = sum(1 for x in q[n_:n_ + CFG.get("stw", 20)] if len(x) > 2)
            go = e.can(5, 1 + soon) and self.pick(mem, 1000)
            if go:
                mem[0].pre(e)
            run_item(e, it)
            if go:
                mem.pop(0).go(e)
            e.tick(1 + 4 * it[1] + (12 if go else 0))
        q.clear()

    def flush_mem(self, e, mem):
        for m in mem:
            if m.pre(e):
                e("s_nop 0")
            m.go(e)
        mem.clear()

    def init_poll(self):
        return Poll(vPOLL, 1, f"v{vL4}, s[{S_DBG}:{S_DBG+3}], 0 offen", 0)

    def start_g1(self, e, st):
        q = self.center_valu(0)
        self.quad_start(e, 0)
        for _ in range(8):
            run_item(e, q.pop(0))
        e.wait(lg=("r", 0))
        st(e)
        self.dma_next, self.free_upto = (5 if self.typ == 'B' else 4) * self.nwt, -1
        self.pool, self.loc, self.ring_need = [], {}, 0
        self.sim_start(e, CFG.get("pend", 8))
        return q

    @staticmethod
    def accs(base, n=4):
        return [v(base + 16 * t, 16) for t in range(n)]

    def issue1(self, e, mem, force=False):
        if not self.pick(mem, 1000, force):
            return False
        mem[0].pre(e)
        if " m0," in e.lines[-1]:
            e("s_nop 0")
        mem.pop(0).go(e)
        return True

    def path_A(self, e, st):
        self.typ, self.srd_done, self.over = "A", None, 0
        self.look, self.st, self.NW, self.wlimit, self.fs = [], st, 120, 1000, 16
        self.setup_g1(e)
        pf = []
        tv, tm = self.touch_item(S_P, 96, 97, CFG.get("tA0", CFG.get("pkA0", 3)))
        self.xloop(e, st, self.late_setup() + tv, 1000, self.pack_setup())
        q = self.start_g1(e, st)
        self.wlimit = 35
        ev = {}

        def add(u, t, fn, cost=1):
            ev.setdefault((u, t), []).append((fn, cost))

        ip = self.init_poll()
        add(1, 2, ip.issue)
        add(24, 2, ip.check, 2)
        q2 = self.var_items() + self.pack_setup_v()
        if CFG.get("touch", 1):
            pf.append(tm)
        u1 = CFG.get("pkA1", 18)
        self.pack_events(e, add, pf, 208, CFG.get("pkA0", 3), u1, True, lambda: not q2)

        def unl(e):
            assert not any(t[0] == "pkr" for t, _ in e.lgq)
            self.wlimit = 1000
        add((u1 + 2 + 2) // 4 * 4 + 2, 0, unl, 0)
        us = CFG.get("pkAs", 29)
        ev[("barwait", us)] = ["pks"]

        def chk_pk():
            assert e.issued.get("pks") == 4
        ev[("barchk", us)] = chk_pk
        add(us + 1, 0, lambda e: signal(e, sCPK, C_PK), 4)

        def rotf(e):
            assert self.dma_next >= 40, self.dma_next
            q2.extend(self.rot_items())
        if CFG.get("rot2", 0):
            add(CFG.get("rotA", 29), 0, rotf, 0)
        self.quad(e, 0, self.accs(ACC[0]), q, ev, 120, pf=pf, center=True, q2=q2, qstart=0)
        print("table items left", len(q2), file=sys.stderr)
        rest = list(q2)
        q2.clear()
        assert not pf
        self.rep(e, "quad1")
        assert not q and not q2, (len(q), len(q2))
        print("centering overflow", self.over, file=sys.stderr)
        st(e)
        e(f"s_cmp_lt_u32 s{sID}, 5\ns_cbranch_scc1 L_Aq")
        keys = ("dma_next", "m0key", "srd_done", "free_upto")
        save = [getattr(self, k) for k in keys]
        eq = e.fork()
        n0 = st.n

        def quad2(e, q, bud):
            self.pool, self.loc, self.sbkey, self.sakey = list(H1), {}, None, None
            pp = SPoll(12, [(sCID, C_PK), (sCID, C_PK + 2048)], 1)
            pc = CFG["pkchk"]
            pf = self.p2_items()
            self.gate(pf, "B1", pc + 1)
            ev = {(pc - 5, 2): [(pp.issue, 5)], ("barpoll", pc): pp}
            q[0:0] = rest
            e.free_tags = [("h", 9)]
            self.stq, self.st_at = pf, lambda th: (CFG.get("s20", 21), CFG.get("s21", 37))[th]

            def chk(e, th):
                assert any(m.dl == -50 + th for m in pf), ("epilogue late", th, len(q))
            for th in range(2):
                ev.setdefault((self.st_at(th) - 1, 3), []).append((lambda e, th=th: chk(e, th), 0))
            self.quad(e, 1, self.accs(ACC[1]), q, ev, 120, pf=pf, budget=bud)
            e.free_tags = []
            assert not q and not any(m.dl < -40 for m in pf)
            return pf, 0

        pf, n = quad2(e, self.epi_gu(ACC[0], 2, -10, 1), lambda u: 6 if u < CFG.get("bp", 8) else 5)
        print("plain epilogue overflow items:", n, file=sys.stderr)
        e.label("L_A3")
        for k, x in zip(keys, save):
            setattr(self, k, x)
        st.n = n0
        eq.label("L_Aq")
        pf, n = quad2(eq, self.epi_q(ACC[0]), lambda u: 6 if u < CFG["bq"] else 5)
        print("q-epilogue overflow items:", n, "done at", self.qdone, "pf left", len(pf), file=sys.stderr)
        eq("s_branch L_A3")

        def norm(vq):
            return [t for t, m in vq if t[0] != "h"]
        assert norm(e.vmq) == norm(eq.vmq), (e.vmq, eq.vmq)
        assert e.lgq == eq.lgq
        def after(vq):
            k = max([i for i, (t, m) in enumerate(vq) if t[0] == "h"] + [-1])
            return len([1 for t, m in vq[:k + 1] if t[0] != "h"]) if k >= 0 else -1
        kq = max(after(e.vmq), after(eq.vmq))
        nq = [(t, False) for t in norm(e.vmq)]
        e.vmq = nq if kq < 0 else nq[:kq] + [("hq", True)] + nq[kq:]
        self.rep(e, "quad2")
        self.gate(pf, "B1", 0)
        st(e)
        q = self.epi_gu(ACC[1], 1, 6, 8)
        self.stq, self.st_at = pf, lambda th: 0
        ev = {}
        pp2 = SPoll(12, [(sCID, C_PK2), (sCID, C_PK2 + 2048)], 5)
        pc2 = CFG["pk2chk"]
        add(pc2 - 5, 2, pp2.issue, 5)
        ev[("barpoll", pc2)] = pp2
        self.gate(pf, "B2", pc2 + 1)
        u0 = CFG["pqsig"]
        ev[("barwait", u0)] = ["hq"]
        add(u0, 1, lambda e: e(f"s_and_b32 s{sT3}, s{sW}, 1\ns_mul_i32 s{sT3}, s{sT3}, 5\ns_add_u32 s{sT3}, s{sT3}, s{sID}"), 3)
        add(u0 + 1, 0, lambda e: signal(e, sCME, C_PQ, f"s_cmp_ge_u32 s{sT3}, 5"), 4)
        u1 = CFG["e1sig"]
        ev[("barwait", u1)] = [("h", 0)]
        h0 = e.issued.get(("h", 0), 0)

        def chk_e1():
            assert e.issued[("h", 0)] == h0 + 2
        ev[("barchk", u1)] = chk_e1
        add(u1 + 1, 0, lambda e: signal(e, sCME, C_E1), 4)
        ec = CFG["e1chk"]
        q2 = []

        def avf(e):
            assert self.dma_next == 120, self.dma_next
            q[0:0] = self.av_items()
        add(ec - 6, 1, avf, 0)
        p1 = SPoll(8, [(sCP2, C_E1)], 2)
        add(ec - 4, 1, p1.issue, 4)
        ev[("barpoll", ec)] = p1
        self.gate(pf, "E1", ec + 1)
        for n in range(5):
            self.gate(pf, ("BO", n), 4 * ((20 * n + 19) // 16) + 6)
        e2 = CFG["e2at"]
        self.quad(e, 2, self.accs(ACC[0]), q, ev, 120, pf=pf, budget=lambda u: 6 if u < CFG["b3"] else 5, release=True,
                  endbar=(ec,) if ec > 33 else None)
        print("epilogue left", len(q), "done at", self.qdone, file=sys.stderr)
        assert not q and not any(m.dl < -40 for m in pf)
        self.rep(e, "quad3")
        print("pf left after quad3:", len(pf), "pool", len(self.pool), "lookahead", self.look, file=sys.stderr)
        st(e)
        e.vmq = [(("h2" if t[0] == "h" else t), m) for t, m in e.vmq]
        e.done["h2"] = e.done.get(("h", 1), 0)
        mem = pf
        self.pool += [a(x, 4) for x in range(160, 208, 4)]
        ch = self.epi_gu_pk(ACC[0], 2, 38, 1)
        p2 = SPoll(8, [(sCP2, C_E2)], 3)
        if e2:
            e.nop(6)
        for c in range(5):
            if c == e2:
                e.wait(vm="h2")
                e("s_barrier")
                signal(e, sCME, C_E2)
                if c == 0:
                    e.nop(4)
            if c == 3 and CFG.get("e2chk", 1) == 1:
                p2.issue(e)
            if c < 4:
                self.mix(e, ch[c], mem)
        e("s_nop 0")
        self.pool += [v(x, 4) for x in range(64, 92, 4)]
        print("mem left at phase 2:", len(mem), file=sys.stderr)
        st(e)
        pO = SPoll(8, [(sCP2, C_O)], 6)
        pre = {}
        c2, c3 = CFG.get("e2chk", 1), CFG.get("ochk", 3)
        if c2 >= 2:
            pre.setdefault(c2 - 2, []).append(lambda: p2.issue(e))

        def f2():
            p2.check(e)
            e("s_barrier")
            self.gate(mem, "E2")
        pre.setdefault(c2, []).append(f2)
        pre.setdefault(max(c2, c3 - 2), []).append(lambda: pO.issue(e))

        def f3():
            pO.check(e)
            e("s_barrier")
            self.gate(mem, "O")
        pre.setdefault(c3, []).append(f3)
        self.sig5 = C_L
        self.phase2(e, st, mem, pre)
        i1, i2 = e.lines.index("s_cbranch_scc1 L_Aq"), e.lines.index("L_A3:")
        errs = check_hazards(e.lines, "A") + check_hazards(e.lines[i1 - 60:i1 + 1] + eq.lines + e.lines[i2:i2 + 60], "Aq")
        errs += check_async(e.lines, "A") + check_async(e.lines[:i1 + 1] + eq.lines + e.lines[i2:], "Aq")
        return e.lines + eq.lines + e.slow + eq.slow, errs

    def path_B(self, e, st):
        self.typ, self.srd_done, self.over = "B", None, 0
        CUR[0] = "B"
        self.look, self.st, self.NW, self.wlimit, self.fs = [], st, 90, 49, 20
        T, L = vT, vLANE
        e.label("L_B")
        self.setup_g1(e)
        self.setup_B(e)
        first = self.setup_B2() + self.late_setup() + self.ktr_items()
        self.xloop(e, st, first, 1000, self.pack_setup())
        q = self.start_g1(e, st)
        ev = {}

        def add(u, t, fn, cost=1):
            ev.setdefault((u, t), []).append((fn, cost))

        K0, K1, T2, V0, V1 = [32 + 16 * i for i in range(5)]
        RV, RK, TB = 112, 128, 144
        RSC = 32 * 1024
        PD = 220
        sKVS, sKVP, sPQP = SEG1, SEG1 + 1, SEG1 + 2
        ip = self.init_poll()
        pk0 = CFG.get("pk0", 20)
        add(4, 2, ip.issue)
        add(12, 2, ip.check, 2)
        pf = []
        tv, tm = self.touch_item(S_DBG, T + 6, vPOLL, pk0)
        tm.prio = False
        add(13, 0, lambda e: q2.extend(tv), 0)

        def chk2(e):
            assert not q2
        add(pk0 - 1, 0, chk2, 0)
        if CFG.get("touch", 1):
            pf.append(tm)
        self.pack_events(e, add, pf, PD, pk0, CFG.get("pk1", 35), False, lambda: True)
        pp = SPoll(12, [(sCID, C_PK), (sCID, C_PK + 2048)], 1)
        pkl = CFG.get("pkl", 0)
        if not pkl:
            add(34, 1, pp.issue, 5)
            ev[("barpoll", 39)] = pp

        def rotf(e):
            assert self.dma_next >= 50 and e.issued.get("pk") == 4, self.dma_next
            q2.extend(self.rot_items())
        if CFG.get("rot2", 0):
            add(CFG.get("rotB", 30), 0, rotf, 0)
        t_ = f"v_and_b32 v{T}, 31, v{L}\nv_lshlrev_b32 v{T}, 2, v{T}\ns_lshl_b32 s{sT1}, s{sW}, 8\ns_add_u32 s{sT1}, s{sT1}, {RSC}\n"
        t_ += f"v_add_u32 v{T}, s{sT1}, v{T}\nv_lshrrev_b32 v{T+1}, 5, v{L}\nv_lshlrev_b32 v{T+1}, 4, v{T+1}\nv_add_u32 v{T+1}, s{sT1}, v{T+1}\n"
        t_ += f"v_mov_b32 v{T+7}, 0x3f803f80\ns_mul_i32 s{sT3}, s{sW}, 3072\ns_add_u32 s{sT3}, s{sT3}, kvtab-L_pc\n"
        t_ += f"s_lshl_b32 s{sQ0}, s{sID}, 13\ns_add_u32 s{sQ0}, s{sQ0}, {WS_KV}\ns_lshl_b32 s{sT2}, s{sW}, 11\n"
        q2 = self.var_items() + self.pack_setup_v() + lines_to_items(t_)
        XW = KTR[0]
        def rvw(e):
            assert not any("kvtab" in it[0] for it in q2)
            e.lg(f"ds_write_b32 v{T}, v{vR}", "rv")
        add(34, 3, rvw, 2)
        add(35, 3, lambda e: e.lg(f"ds_write_b32 v{T}, v{vK2} offset:128", "rv"), 2)

        def chkq(e):
            assert not q
        add(38, 0, chkq, 0)
        for j in range(4):
            add(38, j, lambda e, j=j: e.lg(f"ds_read_b128 {v(RK+4*j,4)}, v{T+1} offset:{128+32*j}", "rv"))
            add(38, j, lambda e, j=j: e.lg(f"ds_read_b128 {v(RV+4*j,4)}, v{T+1} offset:{32*j}", "rv"))
        add(39, 1, lambda e: e(f"v_add_u32 v{XW}, s{sT2}, v{vL16}\nv_bfe_i32 v{XW+1}, v{L}, 4, 1"), 2)
        ev[("barlg", 39)] = ["rv"]
        self.quad(e, 0, self.accs(32, 5), q, ev, 40, pf=pf, center=True, q2=q2, qstart=0, endbar=(39,))
        assert not q and self.dma_next >= 50
        print("B table items left", len(q2), file=sys.stderr)
        drain(e, q2)
        self.rep(e, "kv5")
        print("B centering overflow", self.over, "pf left", len(pf), "next W", self.dma_next, "lookahead", self.look, file=sys.stderr)
        st(e)
        TA, TX = 104, 88
        e.nop(8)
        self.pool, self.loc, self.sbkey, self.sakey = [x for x in H1 if not regs(x) & regs(a(PD, 16))], {}, None, None
        mem = pf + self.p2_items()
        if not pkl:
            self.gate(mem, "B1")
        nws = CFG.get("nwsB", 70)
        self.wlimit = 1000
        for V in range(self.dma_next, nws):
            mem.append(M(lambda e, V=V: self.q_dma_pre(e, V), lambda e, V=V: self.q_dma(e, V), -4 + V / 1000, cls="W"))

        def xw(tile, reg, c):
            return (lambda e: e.lg(f"ds_write_b128 v{XW}, {v(reg,4)} offset:{XB+tile*8192+c*1024}", "xw"), 1)

        def phi(src, tile):
            return [xw(tile, src + 4 * it[1], it[1]) if it[0] is None else it for it in self.phi_items(src, lambda r: RK + r, src)]

        def vsc(src, dst, tile, mask):
            q = []
            for r in range(0, 16, 2):
                q.append((f"v_pk_mul_f32 {v(dst+r,2)}, {v(src+r,2)}, {v(RV+r,2)}", 1))
            for c in range(2):
                for r in range(8 * c, 8 * c + 8, 2):
                    q.append((f"v_cvt_pk_bf16_f32 v{dst+(r>>1)}, v{dst+r}, v{dst+r+1}", 1))
                if mask:
                    for r in range(4):
                        q.append((f"v_bfi_b32 v{dst+4*c+r}, v{XW+1}, v{dst+4*c+r}, v{T+7}", 1))
                q.append(xw(tile, dst + 4 * c, c))
            return q

        self.mix(e, vsc(T2, TB, 5, True) + vsc(V0, V0, 3, False) + vsc(V1, V1, 4, False), mem)
        SP = f"s[{S_P}:{S_P+3}]"
        for k, r_ in enumerate((TX, TA, TA + 4)):
            mem.append(M(None, lambda e, k=k, r_=r_: e.vm(f"buffer_load_dwordx4 {v(r_,4)}, v{vL16}, {SP}, s{sT3} offen offset:{k*1024}", "tab"), -5))
        ps = CFG.get("pksig", 3)
        for n_, (src, tile) in enumerate(((K0, 0), (K1, 1), (T2, 2))):
            if pkl and n_ == 2:
                pp.issue(e)
            self.mix(e, phi(src, tile), mem)
            if n_ + 1 == ps and ps < 3:
                assert e.issued.get("pks") == 4
                e.wait(vm="pks")
                e("s_barrier")
                signal(e, sCPK, C_PK2)
        assert e.issued.get("tab") == 3 and e.issued.get("pks") == 4
        if pkl:
            pp.check(e, vm=["tab", "pks"])
            self.gate(mem, "B1")
        e.wait(vm=["tab", "pks"], lg="all")
        e("s_barrier")
        if ps == 3:
            signal(e, sCPK, C_PK2)
        self.pool += [a(PD + 4 * k, 4) for k in range(4)]
        st(e)
        XO = [("a", 160), ("a", 176), ("a", 192), ("v", 112), ("v", 128), ("v", 144), ("v", 64), ("a", 160)]
        R1, R2 = v(K0, 16), v(K1, 16)

        def xr(j):
            for i in range(4):
                e.lg(f"ds_read_b128 {R(XO[j],4*i,4)}, v{TX+i} offset:{j*1024}", ("xr", j))

        xr(0), xr(1), xr(2)
        rq = []
        for j in range(8):
            e.wait(lg=("xr", j))
            e(f"v_mfma_f32_32x32x16_bf16 {R1}, {R(XO[j],0,4)}, {R(XO[j],4,4)}, {'0' if j == 0 else R1}")
            if j + 3 < 8:
                xr(j + 3)
            else:
                fill(e, rq, 4)
            e.tick(40)
            go = e.can(5) and self.pick(mem, 1000)
            if go:
                mem[0].pre(e)
            e(f"v_mfma_f32_32x32x16_bf16 {R2}, {R(XO[j],8,4)}, {R(XO[j],12,4)}, {'0' if j == 0 else R2}")
            if go:
                mem.pop(0).go(e)
            fill(e, rq, 3)
            e.tick(35)
        q = lines_to_items(
            f"s_mul_i32 s{sT3}, s{sW}, 1680\ns_add_u32 s{sT1}, s{sT3}, {CKV}\ns_add_u32 s{sT3}, s{sT3}, s{sQ0}\n"
            f"v_add_u32 v{T}, s{sT1}, v{vL4}\nv_cmp_gt_u32 vcc, 36, v{L}\nv_mov_b32 v{T+1}, {OOB}\n"
            f"s_lshl_b32 s{sT4}, s{sW}, 11\nv_cndmask_b32 v{T+1}, v{T+1}, v{vL4}, vcc\ns_add_u32 s{sQ0}, s{sQ0}, s{sT4}\n"
            f"s_mul_i32 s{sT2}, s{sW}, 3072\ns_add_u32 s{sT2}, s{sT2}, {KFX}\nv_add_u32 v{XW}, s{sT2}, v{vL16}\nv_add_u32 v{XW+1}, {KFX}, v{vL16}")
        for i in range(6):
            q.append((lambda e, i=i: e.lg(f"ds_write_b128 v{TA+i}, {v(K0+4*i,4)}", "cw"), 5))
        self.mix(e, q, mem)
        while e.issued.get(("w", 11), 0) < 4:
            self.issue1(e, mem)
        self.dma_next = max(self.dma_next, nws - len([m for m in mem if m.cls == "W"]))
        mem = [m for m in mem if m.cls != "W"]
        self.fs, self.free_upto = 16, 39
        e.wait(vm=("w", 10), lg="all")
        e("s_barrier")
        AD = 112
        for i in range(7):
            e.lg(f"ds_read_b32 v{AD+i}, v{T} offset:{256*i}", ("cr", i))
        for fn in self.reads(40) + self.reads(41):
            fn(e)
        e.tick(150)
        e.wait(lg=("r", 40))
        st(e)
        self.rep(e, "epi")
        pf = mem
        for i in range(7):
            pf.append(M(None, lambda e, i=i: e.vm(
                f"buffer_atomic_add_f32 v{AD+i}, v{vL4 if i < 6 else T+1}, {WS}, s{sT3} offen offset:{256*i}", "at"), -30 + i, 0, True))
        ev = {}
        t_ = f"s_lshl_b32 s{sT1}, s{sID}, 11\ns_add_u32 s{sT1}, s{sT1}, {WS_CNT}\ns_lshr_b32 s{sT2}, s{sW}, 1\ns_lshl_b32 s{sT2}, s{sT2}, 10\n"
        t_ += f"s_add_u32 s{sKVS}, s{sT1}, s{sT2}\ns_and_b32 s{sT2}, s{sRB}, 1\ns_lshl_b32 s{sT2}, s{sT2}, 10\ns_add_u32 s{sKVP}, s{sT1}, s{sT2}\n"
        t_ += f"s_and_b32 s{sT2}, s{sID}, 1\ns_lshl_b32 s{sT2}, s{sT2}, 10\ns_add_u32 s{sPQP}, s{sCME}, s{sT2}\n"
        t_ += f"s_lshl_b32 s{sT1}, s{sRB}, 2\ns_add_u32 s{sT1}, s{sT1}, s{sW}\ns_lshl_b32 s{sT1}, s{sT1}, 3\ns_add_u32 s{sT1}, s{sT1}, s{sID}\n"
        t_ += f"s_mul_i32 s{sT1}, s{sT1}, 5120\ns_add_u32 s{sQ1}, s{sT1}, {WS_PQ}\n"
        for b_ in range(5):
            t_ += f"s_mul_i32 s{sT1}, s{sID}, 5\ns_add_u32 s{sT1}, s{sT1}, {108+b_}\ns_lshr_b32 s{sT2}, s{sT1}, 1\ns_lshl_b32 s{sT2}, s{sT2}, 12\n"
            t_ += f"s_and_b32 s{sT1}, s{sT1}, 1\ns_lshl_b32 s{sT1}, s{sT1}, 9\ns_add_u32 s{sT1}, s{sT1}, s{sT2}\ns_add_u32 s{OST+b_}, s{sT1}, s{sHB}\n"
        q = rq
        nrot = len(lines_to_items(t_))
        q += lines_to_items(t_)
        pp = SPoll(12, [(sCID, C_PK2), (sCID, C_PK2 + 2048)], 6)
        pc = CFG.get("pkchkB", 9)
        add(pc - 5, 1, pp.issue, 5)
        ev[("barpoll", pc)] = pp
        self.gate(pf, "B2", pc + 1)
        for n in range(3):
            self.gate(pf, ("BO", n), 2)
        us = CFG.get("kvsig", 13)
        ev[("barwait", us)] = ["at"]

        def chk_at():
            assert e.issued.get("at") == 7 and len(q) <= nrot - 11
        ev[("barchk", us)] = chk_at
        add(us + 1, 0, lambda e: signal(e, sKVS, C_KV), 4)
        pk = SPoll(16, [(sKVP, C_KV)], 4)
        uk = CFG.get("kvchk", 29)
        add(uk - 5, 1, pk.issue, 4)
        ev[("barpoll", uk)] = pk
        pf += [M(lambda e: self.set_m0(e, "ckv", f"s_add_u32 m0, s{sT4}, {CKV + 12288}"),
                 lambda e, i=i: e.vm(f"buffer_load_dwordx4 v{vL16}, {WS}, s{sQ0} offen offset:{i*1024} sc1 lds", "ckv"), -9 + i, uk + 1, True) for i in range(2)]
        ppq = SPoll(5, [(sPQP, C_PQ)], 5)
        uq = CFG.get("pqchk", 36)
        add(uq - 5, 1, ppq.issue, 4)
        ev[("barpoll", uq)] = ppq
        ev[("barwait", uq)] = ["ckv"]

        def chk_ckv():
            assert e.issued.get("ckv") == 2
        ev[("barchk", uq)] = chk_ckv
        PQ = [144, 148, 152, 156, 224]
        pf += [M(None, lambda e, i=i: e.vm(
            f"buffer_load_dwordx4 {v(PQ[i],4)}, v{vL16 if i < 4 else vL16B}, {WS}, s{sQ1} offen offset:{(i&3)*1024} sc1", "pq"), -8 + i / 10, uq + 1, True) for i in range(5)]

        def avf(e):
            assert self.dma_next == 90, self.dma_next
            q.extend(self.av_items())
        add(30, 0, avf, 0)
        KL = 112
        for i in range(6):
            add(uq + 1, i // 2, lambda e, i=i: e.lg(f"ds_read_b128 {v(KL+4*i,4)}, v{TA+i} offset:12288", "kl"))

        def cvt(e):
            q.append((lambda e: e.wait(lg="kl"), 1))
            for f in range(3):
                for i in range(4):
                    q.append((f"v_cvt_pk_bf16_f32 v{KL+8*f+i}, v{KL+8*f+2*i}, v{KL+8*f+2*i+1}", 1))
                q.append((lambda e, f=f: e.lg(f"ds_write_b128 v{XW}, {v(KL+8*f,4)} offset:{f*1024}", "kw"), 1, "mem"))
        add(uq + 2, 0, cvt, 0)
        self.quad(e, 1, self.accs(32), q, ev, 80, pf=pf, release=True, endbar=(uq,) if uq > 33 else None)
        drain(e, q)
        e.wait(lg="all")
        e("s_barrier")
        self.rep(e, "quad")
        print("B pf left", len(pf), "pool", len(self.pool), "lookahead", self.look, file=sys.stderr)
        st(e)
        mem = pf
        self.gate(mem, ("BO", 4))
        e.lat = lambda tag: CFG["lmB"] if lat1(tag) == CFG["lm"] else lat1(tag)
        ft = [(0, 0), (0, 1), (0, 2), (1, 2), (1, 3), (1, 1), (2, 0), (2, 1), (1, 4), (2, 2), (2, 3), (2, 4)]
        order = [6, 7, 9, 10, 11, 0, 1, 2, 5, 3, 4, 8]
        for f in order:
            e.lg(f"ds_read_b128 {a(FR+4*f,4)}, v{XW+1} offset:{f*1024}", ("kf", f))
        ch = self.epi_gu_pk(32, 2, 22, 1)
        p1 = SPoll(8, [(sCP2, C_E1)], 2)
        while e.issued.get("pq", 0) < 5:
            self.issue1(e, mem)
        O = [96, 112, 128]
        e.wait(vm="pq")
        seen = set()
        for n, f in enumerate(order):
            t, b_ = ft[f]
            C = v(O[t], 16)
            e.wait(lg=("kf", f))
            go = n < 4 and e.can(5) and self.pick(mem, 1000)
            if go:
                mem[0].pre(e)
            e(f"v_mfma_f32_32x32x16_bf16 {C}, {a(FR+4*f,4)}, {v(PQ[b_],4)}, {C if t in seen else '0'}")
            seen.add(t)
            if go:
                mem.pop(0).go(e)
            e.tick(33)
        self.pool += [a(x, 4) for x in range(160, 208, 4)]
        D = O[2]
        q = lines_to_items(f"v_cmp_gt_u32 vcc, 32, v{L}\ns_nop 3")
        for j in range(4):
            q.append((f"v_add_f32 v{D+j}, {f32(1e-6)}, v{D+j}", 1))
        for j in range(4):
            q.append((f"v_rcp_f32 v{D+j}, v{D+j}", 2))
        q += lines_to_items(f"v_cndmask_b32 v{D+4}, v{D+1}, v{D}, vcc\ns_nop 0\nv_cndmask_b32 v{D+5}, v{D+3}, v{D+2}, vcc")
        rs = {(0, 0): D, (0, 1): D, (0, 2): D + 4, (0, 3): D + 1, (1, 0): D + 1, (1, 1): D + 2, (1, 2): D + 2, (1, 3): D + 5, (2, 2): D + 3, (2, 3): D + 3}
        for b_, (t, c) in ((4, (2, 1)), (0, (0, 0)), (1, (0, 1)), (2, (1, 0)), (3, (1, 1))):
            base = O[t] + 8 * c
            for r in range(0, 8, 2):
                rr = rs[(t, 2 * c + (r >> 2))]
                sel = "op_sel_hi:[1,0]" if rr % 2 == 0 else "op_sel:[0,1] op_sel_hi:[1,1]"
                q.append((f"v_pk_mul_f32 {v(base+r,2)}, {v(base+r,2)}, {v(rr & ~1,2)} {sel}", 1))
            for r in range(4):
                q.append((f"v_cvt_pk_bf16_f32 v{base+r}, v{base+2*r}, v{base+2*r+1}", 1))
            q.append((lambda e, base=base, b_=b_: e.vm(f"buffer_store_dwordx4 {v(base,4)}, v{vHS}, {WS}, s{OST+b_} offen sc1", "o"), 1, "mem"))
        p1.issue(e)
        self.mix(e, q, [])
        st(e)
        self.mix(e, ch[0], mem)
        p1.check(e)
        e("s_barrier")
        self.gate(mem, ("BO", 3))
        self.gate(mem, "E1")
        self.mix(e, ch[1] + ch[2] + ch[3], mem)
        st(e)
        e.wait(vm="o")
        e("s_barrier")
        signal(e, sCME, C_O)
        self.pool += [v(x, 4) for x in range(64, 92, 4)]
        print("B mem left at phase 2:", len(mem), file=sys.stderr)
        st(e)
        p2 = SPoll(8, [(sCP2, C_E2), (sCP2, C_O)], 3)
        pre = {}
        c2 = CFG.get("e2chkB", 3)
        pre.setdefault(c2 - 2, []).append(lambda: p2.issue(e))

        def f1():
            e.wait(vm=("h", 1))
            e("s_waitcnt lgkmcnt(0)\ns_barrier")
            signal(e, sCME, C_BH)
            p2.check(e, nowait=True)
            e("s_barrier")
            self.gate(mem, "E2")
            self.gate(mem, "O")
        pre.setdefault(c2, []).append(f1)
        self.sig5 = None
        self.phase2(e, st, mem, pre)
        return e.lines + e.slow, check_hazards(e.lines, "B")

    def phase2(self, e, st, mem, pre):
        L = vLANE
        vRW, vIO, vO2, vO, vL16C = 8, 16, 19, 20, 21
        S_O = S_W
        t_ = f"v_add_u32 v{vL16C}, 0x10000, v{vL16}\n"
        for i in range(4):
            t_ += f"s_add_u32 s{sT0}, s{sW}, {i}\ns_and_b32 s{sT0}, s{sT0}, 3\ns_mul_i32 s{sT0}, s{sT0}, 15360\n"
            t_ += f"s_add_u32 s{sT0}, s{sT0}, {max(i-1, 0)*5120 + FREG}\nv_add_u32 v{vRW+i}, s{sT0}, v{vL16}\n"
        t_ += f"s_mov_b32 s{S_X}, s{P_X}\ns_mov_b32 s{S_X+1}, s{P_X+1}\ns_mov_b32 s{S_X+2}, {2048*1280}\n"
        t_ += f"s_mov_b32 s{S_O}, s{P_OUT}\ns_mov_b32 s{S_O+1}, s{P_OUT+1}\ns_mov_b32 s{S_O+2}, {2048*1280}\n"
        for i in range(3):
            t_ += f"v_add_u32 v22, {64*i}, v{L}\nv_mul_u32_u24 v23, 205, v22\nv_lshrrev_b32 v23, 11, v23\n"
            t_ += f"v_mul_u32_u24 v23, 1120, v23\nv_add_u32 v{vIO+i}, v23, v{vL16}\n"
        t_ += f"v_bfe_i32 v22, v{L}, 5, 1\nv_and_b32 v22, {OOB}, v22\nv_or_b32 v{vIO+2}, v{vIO+2}, v22\n"
        t_ += f"v_and_b32 v22, 15, v{L}\nv_mul_u32_u24 v22, 160, v22\nv_lshrrev_b32 v23, 4, v{L}\nv_lshl_add_u32 v22, v23, 3, v22\n"
        t_ += f"v_add_u32 v{vO}, s{sW4K}, v22\nv_add_u32 v{vO2}, s{sW4K}, v{vL16}\n"
        t_ += f"s_and_b32 s{sT0}, s2, 7\ns_lshl_b32 s{sT0}, s{sT0}, 2\ns_lshr_b32 s{sT1}, s2, 6\ns_add_u32 s{sT0}, s{sT0}, s{sT1}\n"
        t_ += f"s_lshl_b32 s{sT0}, s{sT0}, 2\ns_add_u32 s{sT0}, s{sT0}, s{sW}\ns_mul_i32 s{sO}, s{sT0}, {16*1280}\n"
        t_ += f"s_bfe_u32 s{sT1}, s2, 0x30003\ns_mul_i32 s{sT1}, s{sT1}, 160\ns_add_u32 s{sO}, s{sO}, s{sT1}\n"
        t_ += f"s_mov_b32 s{sT2}, {f32(-LOG2E)}\ns_mov_b32 s{sT3}, s{sT2}\n"
        vq = lines_to_items(t_)
        lq, wq = [], []
        pL = SPoll(8, [(sCP2, C_L)], 7)
        seen = set()
        forced = [0]
        e.lat = lat2
        self.rep(e, "p2 start")

        def gap(n, vb=1):
            e.tick(17)
            used = 0
            if vb and e.can(17) and self.pick(mem, 1000):
                used = mem[0].pre(e)
                if not used and e.can(0):
                    mem.pop(0).go(e)
                    used = 1
            if not used:
                if wq and n % 3 == 2:
                    run_item(e, wq.pop(0))
                    used = 1
                elif lq:
                    run_item(e, lq.pop(0))
                    used = 1
            fill(e, vq, vb - used, True)

        def need(tags, lg=None):
            for tag, cnt in tags:
                while e.issued.get(tag, 0) < cnt:
                    assert self.issue1(e, mem, True), tag
                    forced[0] += 1
            tl = [t for t, _ in tags]
            while e.ready() + 20 < e.eta(tl) and self.issue1(e, mem):
                pass
            e.wait(vm=tl, lg=lg)

        def mf(i, tt, j):
            C = v(ACCF[5 * tt + j], 4)
            if j == 0:
                need([(("A", i, tt), 1), (("B", i), 5)])
            e(f"v_mfma_f32_16x16x32_bf16 {C}, {self.loc[('B', i, j)]}, {self.loc[('A', i, tt)]}, {C if (tt, j) in seen else '0'}")
            seen.add((tt, j))

        def slot(i):
            for fn in pre.get(i, []):
                fn()
            for n, (tt, j) in enumerate([(tt, j) for tt in TT for j in range(5)]):
                mf(i, tt, j)
                gap(n)
                if j == 4:
                    self.pool.append(self.loc[("A", i, tt)])
                if tt == 0:
                    self.pool.append(self.loc[("B", i, j)])
            if CFG.get("fine"):
                st(e)

        ring = []

        def bord(f):
            off = f * 1024
            return (lambda e: e.lg(f"ds_read_b128 {ring[f % 15]}, v{vL16 if off < 65536 else vL16C} offset:{off & 0xffff}", ("bo", f // 5)), 1)

        pBH = SPoll(8, [(sCP2, C_BH)], 0)
        kb = CFG.get("bhchk" + self.typ, 4)

        def bo_ready():
            need([("BO", 25)] + ([(("h", 1), 1)] if self.sig5 else []))
            e("s_barrier")
            if self.sig5:
                signal(e, sCME, self.sig5)
            pBH.issue(e)
            assert len(self.pool) >= 10, len(self.pool)
            for _ in range(10):
                ring.append(self.pool.pop())
            self.ring_need = 0
            lq.extend(bord(f) for f in range(10))
        pre.setdefault(5, []).append(bo_ready)

        def rsv():
            self.ring_need = 10
        pre.setdefault(3, []).append(rsv)
        for i in range(6):
            slot(i)
        drain(e, lq)
        for _ in range(5):
            ring.append(self.pool.pop())
        st(e)
        for k in range(20):
            if k == kb:
                pBH.check(e)
                e("s_barrier")
                self.gate(mem, "BH")
            if k == CFG.get("lpoll", 12):
                pL.issue(e)
            need([(("AO", k), 1)], lg=("bo", k))
            for j in range(5):
                C = v(ACCS[j], 4)
                e(f"v_mfma_f32_16x16x32_bf16 {C}, {ring[(5*k+j) % 15]}, {self.loc[('AO', k)]}, {C if k else '0'}")
                if k < 18:
                    run_item(e, bord(5 * k + j + 10))
                gap(0, 1 if j < 4 else 0)
            self.pool.append(self.loc[("AO", k)])
        self.pool += ring
        st(e)

        def fl():
            pL.check(e)
            e("s_barrier")
            self.gate(mem, "L")
            assert not vq
            mem.extend(M(lambda e: self.set_m0(e, "xr", f"s_mov_b32 m0, s{sW4K}"), lambda e, i=i: e.vm(
                f"buffer_load_dwordx4 v{vIO+i}, s[{S_X}:{S_X+3}], s{sO} offen offset:{1024*i} lds", "x", w=1.4), 15.9) for i in range(3))
        pre.setdefault(CFG.get("lchk", 6), []).append(fl)
        for i in range(6, 10):
            slot(i)
        st(e)
        print("p2 mem left at late class", len(mem), file=sys.stderr)
        n = 0
        for k, tt in enumerate(TT):
            if k == 2:
                need([("x", 3)])
                lq += [(lambda e, j=j: e.lg(f"ds_read_b64 {v(XRAW+2*j,2)}, v{vO} offset:{32*j}", "xl"), 1) for j in range(5)]
            if k == 3:
                assert not lq
                vq.append((lambda e: e.wait(lg="xl"), 1))
                for j in range(10):
                    vq += lines_to_items(f"v_lshlrev_b32 v{XUN+2*j}, 16, v{XRAW+j}\nv_and_b32 v{XUN+2*j+1}, 0xffff0000, v{XRAW+j}")
            for i in range(10, 14):
                for j in range(5):
                    mf(i, tt, j)
                    gap(n)
                    n += 1
                    if i == 11 and j == 0 and k > 0:
                        tp = TT[k - 1]
                        wq += [(lambda e, j=j_, tp=tp: e.lg(f"ds_write_b128 v{vRW+tp}, {v(ACCF[5*tp+j],4)} offset:{j*1024}", "w"), 1) for j_ in range(5)]
            if CFG.get("fine"):
                st(e)
        drain(e, wq)
        print("p2 forced", forced[0], "valu left", len(vq), file=sys.stderr)
        self.rep(e, "p2 end")
        e.wait(lg="w")
        e("s_barrier")
        st(e)
        for j in range(5):
            for kk in range(3):
                e.lg(f"ds_read_b128 {v(ACCF[5*(kk+1)+j],4)}, v{vRW} offset:{kk*5120+j*1024}", ("fr", j))
        drain(e, vq)
        for j in range(5):
            e.wait(lg=("fr", j))
            f, s_, t, x = ACCF[j], ACCS[j], ACCF[5 + j], XUN + 4 * j
            for h in (0, 2):
                e(f"v_pk_add_f32 {v(f+h,2)}, {v(f+h,2)}, {v(t+h,2)}")
                e(f"v_pk_add_f32 {v(ACCF[10+j]+h,2)}, {v(ACCF[10+j]+h,2)}, {v(ACCF[15+j]+h,2)}")
            for h in (0, 2):
                e(f"v_pk_add_f32 {v(f+h,2)}, {v(f+h,2)}, {v(ACCF[10+j]+h,2)}")
            for h in (0, 2):
                e(f"v_pk_mul_f32 {v(t+h,2)}, {v(f+h,2)}, s[{sT2}:{sT3}]")
            for r in range(4):
                e(f"v_exp_f32 v{t+r}, v{t+r}")
            for h in (0, 2):
                e(f"v_pk_mul_f32 {v(f+h,2)}, {v(f+h,2)}, {v(s_+h,2)}")
            for h in (0, 2):
                e(f"v_pk_add_f32 {v(t+h,2)}, {v(t+h,2)}, 1.0 op_sel_hi:[1,0]")
            for r in range(4):
                e(f"v_rcp_f32 v{t+r}, v{t+r}")
            e("s_nop 0")
            for h in (0, 2):
                e(f"v_pk_fma_f32 {v(f+h,2)}, {v(f+h,2)}, {v(t+h,2)}, {v(x+h,2)}")
            e(f"v_cvt_pk_bf16_f32 v{f}, v{f}, v{f+1}\nv_cvt_pk_bf16_f32 v{f+1}, v{f+2}, v{f+3}")
            e.lg(f"ds_write_b64 v{vO}, {v(f,2)} offset:{16384+32*j}", "ow")
        for i in range(3):
            e.lg(f"ds_read_b128 {v(XUN+4*i,4)}, v{vO2} offset:{16384+1024*i}", ("or", i))
        for i in range(3):
            e.wait(lg=("or", i))
            e.vm(f"buffer_store_dwordx4 {v(XUN+4*i,4)}, v{vIO+i}, s[{S_O}:{S_O+3}], s{sO} offen offset:{1024*i} {CFG['outsc']}".strip(), "out")
        st(e)
        st.finish(e)
        e("s_endpgm")


def kv_table():
    W = [((0, 3), (1, 3, 0)), ((1, 4), (0, 4, 1)), ((0, 5), (2, 4, 0)), ((1, 5), (2, 5, 0))]
    words = []
    for w in range(4):
        (a1, b1), (a2, b2, x) = W[w]
        tiles, addrs = [], []
        for l in range(64):
            tiles.append([XB + a1 * 8192 + l * 16, XB + b1 * 8192 + l * 16, XB + a2 * 8192 + (l ^ (16 * x)) * 16, XB + b2 * 8192 + l * 16])
            j, hf = l & 31, l >> 5
            ad = []
            for gi in range(6):
                if gi < 4:
                    d0, B_ = 32 * a1 + 8 * gi + 4 * hf, b1
                else:
                    d0, B_ = 32 * a2 + 16 * x + 8 * (gi - 4) + 4 * hf, b2
                hd = d0 // 20
                assert hd < 4
                ep = None
                if B_ == 5 and j < 16:
                    if j < 8 and (j & 3) == hd:
                        ep = 20
                else:
                    e_ = j if B_ == 3 else 32 + j if B_ == 4 else 48 + j
                    if e_ // 20 == hd:
                        ep = e_ - 20 * hd
                unit = (hd * 21 + ep) * 5 + (d0 - 20 * hd) // 4 if ep is not None else 420 + (l % 28)
                ad.append(CKV + unit * 16)
            addrs.append(ad + [0, 0])
        words += [y for t in tiles for y in t]
        words += [y for t in addrs for y in t[:4]]
        words += [y for t in addrs for y in t[4:]]
    return words


def main():
    g = Gen()
    e = Emit()
    st = Stamper()
    g.head(e, st)
    eb = e.fork()
    stb = Stamper(st.n)
    m0 = g.m0key
    nh = len(e.lines)
    la, ea = g.path_A(e, st)
    g.m0key = m0
    lb, ebr = g.path_B(eb, stb)
    errs = ea + ebr + check_hazards(la[:nh] + lb[:60], "headB") + check_async(la[:nh] + eb.lines, "B")
    for x in errs:
        print(x, file=sys.stderr)
    K = NAME + "_kernel"
    out = []
    out.append("; LayerNorm + linear attention + SwiGLU FFN + gated residual in one launch (generated by gen5.py)")
    out.append("; @launch grid=(256,1,1) block=(256,1,1) lds=163840")
    out.append('.amdgcn_target "amdgcn-amd-amdhsa--gfx950"\n.text')
    out.append(f".globl {K}\n.p2align 8\n.type {K},@function\n{K}:")
    out += la
    out.append("L_exit:\ns_endpgm\n.p2align 6")
    out += lb
    out.append("s_endpgm\n.p2align 6\n.type kvtab,@object\nkvtab:")
    tab = kv_table()
    for i in range(0, len(tab), 16):
        out.append(".long " + ",".join("%d" % x for x in tab[i:i + 16]))
    out.append(f".size kvtab, {4*len(tab)}\nL_codeend:")
    out.append('.section .rodata,"a"')
    out.append(f""".p2align 6
.amdhsa_kernel {K}
  .amdhsa_next_free_vgpr 512
  .amdhsa_next_free_sgpr 102
  .amdhsa_accum_offset 256
  .amdhsa_group_segment_fixed_size 0
  .amdhsa_kernarg_size 80
  .amdhsa_user_sgpr_count 2
  .amdhsa_user_sgpr_kernarg_segment_ptr 1
  .amdhsa_system_sgpr_workgroup_id_x 1
  .amdhsa_float_denorm_mode_32 3
.end_amdhsa_kernel
""")
    open(sys.argv[1], "w").write("\n".join(out))
    print("lines", len(la), len(lb), "hazards", len(errs), file=sys.stderr)


main()
```
